```python
import torch

def _softmax(x, axis=-1):
    return torch.softmax(x, dim=axis)

def _gelu(x):
    return torch.nn.functional.gelu(x, approximate='tanh')

def _silu(x):
    return torch.nn.functional.silu(x)

def _sigmoid(x):
    return torch.sigmoid(x)

def _layernorm(x, axis=-1, eps=1e-05):
    m = x.mean(dim=axis, keepdim=True)
    v = x.var(dim=axis, keepdim=True, unbiased=False)
    return (x - m) / torch.sqrt(v + eps)

def _scatter_add(tgt, idx, src, axis=0):
    return tgt.clone().index_add_(axis, idx, src)

def _segment_sum(src, seg, n):
    out = torch.zeros((n,) + src.shape[1:], dtype=src.dtype)
    return out.index_add_(0, seg, src)

def _pad(x, pw):
    flat = tuple((v for pair in reversed(pw) for v in pair))
    return torch.nn.functional.pad(x, flat)
kernel_name = 'gated_mix__memory_aug_recurrent_mem_tr__glu_gated_geglu__prompt'

def setup_inputs():

    _w = lambda a: (lambda t: t.to(torch.bfloat16) if t.is_floating_point() else t)(torch.as_tensor(a))

    def _A_setup():
        B, S, Dm = (1, 2048, 640)
        H, Dh = (32, 192)
        M, seg = (8, 32)
        seg = min(seg, S)
        S = S // seg * seg
        return {'x': _w((lambda *s: torch.randn(*s, dtype=torch.bfloat16) * 0.05)(B, S, Dm)), 'mem0': _w((lambda *s: torch.randn(*s, dtype=torch.bfloat16) * 0.4)(B, M, Dm)), 'Wq': _w((lambda *s: torch.randn(*s, dtype=torch.bfloat16) * 6.4)(Dm, H, Dh) * Dm ** (-0.5)), 'Wk': _w((lambda *s: torch.randn(*s, dtype=torch.bfloat16) * 6.4)(Dm, H, Dh) * Dm ** (-0.5)), 'Wv': _w((lambda *s: torch.randn(*s, dtype=torch.bfloat16) * 0.4)(Dm, H, Dh) * Dm ** (-0.5)), 'Wo': _w((lambda *s: torch.randn(*s, dtype=torch.bfloat16) * 0.4)(H, Dh, Dm) * (H * Dh) ** (-0.5)), 'seg_len': seg}
    _A_in = _A_setup()

    def _B_setup():
        B, S, Dm, Df = (1, 2048, 640, 1536)
        return {'x': _w((lambda *s: torch.randn(*s, dtype=torch.bfloat16) * 0.05)(B, S, Dm)), 'w_gate': _w((lambda *s: torch.randn(*s, dtype=torch.bfloat16) * 1.6)(Dm, Df) * Dm ** (-0.5)), 'w_up': _w((lambda *s: torch.randn(*s, dtype=torch.bfloat16) * 1.6)(Dm, Df) * Dm ** (-0.5)), 'w_down': _w((lambda *s: torch.randn(*s, dtype=torch.bfloat16) * 1.6)(Df, Dm) * Df ** (-0.5))}
    _B_in = _B_setup()
    return {'A_x': _A_in['x'], 'A_mem0': _A_in['mem0'], 'A_Wq': _A_in['Wq'], 'A_Wk': _A_in['Wk'], 'A_Wv': _A_in['Wv'], 'A_Wo': _A_in['Wo'], 'A_seg_len': _A_in['seg_len'], 'B_x': _B_in['x'], 'B_w_gate': _B_in['w_gate'], 'B_w_up': _B_in['w_up'], 'B_w_down': _B_in['w_down'], 'gate_w': _w((lambda *s: torch.randn(*s, dtype=torch.bfloat16) * 0.05)(640) * 16.0)}

def reference(A_x, A_mem0, A_Wq, A_Wk, A_Wv, A_Wo, A_seg_len, B_x, B_w_gate, B_w_up, B_w_down, gate_w):

    def _A_ref(x, mem0, Wq, Wk, Wv, Wo, seg_len):
        B, S, Dm = x.shape
        H, Dh = (Wq.shape[1], Wq.shape[2])
        M = mem0.shape[1]
        scale = Dh ** (-0.5)
        n_seg = S // seg_len
        L = M + seg_len
        idx = torch.arange(L)
        mask = (idx[:, None] < M) | (idx[:, None] >= idx[None, :])
        mem = mem0
        outs = []
        for s in range(n_seg):
            xs = x[:, s * seg_len:(s + 1) * seg_len, :].clone()
            h = torch.concatenate([mem, xs], axis=1)
            q = torch.einsum('btd,dhe->bhte', h, Wq)
            k = torch.einsum('btd,dhe->bhte', h, Wk)
            v = torch.einsum('btd,dhe->bhte', h, Wv)
            scores = torch.einsum('bhqe,bhke->bhqk', q, k) * scale
            scores = torch.where(mask[None, None], scores, -1000000000.0)
            p = _softmax(scores, axis=-1)
            o = torch.einsum('bhqk,bhke->bhqe', p, v)
            o = torch.einsum('bhte,hed->btd', o, Wo)
            mem = o[:, :M, :].clone()
            outs.append(o[:, M:, :])
        return torch.concatenate(outs, axis=1)

    def _B_ref(x, w_gate, w_up, w_down):
        g = torch.einsum('bsd,df->bsf', x, w_gate)
        u = torch.einsum('bsd,df->bsf', x, w_up)
        h = _gelu(g) * u
        return torch.einsum('bsf,fd->bsd', h, w_down)
    x = A_x
    g = _sigmoid((x * gate_w).sum(-1, keepdims=True))
    a = _A_ref(x, A_mem0, A_Wq, A_Wk, A_Wv, A_Wo, A_seg_len)
    b = _B_ref(x, B_w_gate, B_w_up, B_w_down)
    return g * a + (1 - g) * b
```

```python
import re

REG_RE = re.compile(r'^(-?)(abs\()?([vas])(?:(\d+)|\[(\d+):(\d+)\])\)?$')
TRANS = ('v_exp_f32', 'v_log_f32', 'v_rcp_f32', 'v_rsq_f32', 'v_sqrt_f32', 'v_sin_f32', 'v_cos_f32')


def regs_of(tok):
    tok = tok.strip()
    if tok == 'vcc':
        return [('s', 106), ('s', 107)]
    if tok == 'exec':
        return [('s', 126), ('s', 127)]
    if tok == 'm0':
        return [('s', 124)]
    m = REG_RE.match(tok)
    if not m:
        return []
    f = m.group(3)
    if m.group(4) is not None:
        return [(f, int(m.group(4)))]
    return [(f, i) for i in range(int(m.group(5)), int(m.group(6)) + 1)]


class Ins:
    __slots__ = ('text', 'op', 'kind', 'wr', 'rd', 'srcc', 'ab', 'states', 'stdata', 'dpp')

    def __init__(self, text):
        self.text = text
        t = text.split(';')[0].strip()
        self.op = t.split()[0] if t else ''
        rest = t[len(self.op):].strip()
        ops = [o.strip() for o in rest.split(',')] if rest else []
        mods = ''
        if ops:
            parts = ops[-1].split()
            if parts:
                ops[-1] = parts[0]
                mods = ' '.join(parts[1:])
        op = self.op
        self.wr, self.rd, self.srcc, self.ab, self.stdata = [], [], [], [], []
        self.states = 1
        self.dpp = ('_dpp' in op) or ('row_' in mods) or ('quad_perm' in mods)
        R = [regs_of(o) for o in ops]
        if op == 's_nop':
            self.kind = 'nop'
            self.states = int(ops[0], 0) + 1
        elif op.startswith('v_smfmac'):
            self.kind = 'mfma'
            self.wr = R[0]; self.srcc = R[0]; self.ab = R[1] + R[2] + R[3]
            self.rd = self.srcc + self.ab
        elif op.startswith('v_mfma'):
            self.kind = 'mfma'
            self.wr = R[0]; self.srcc = R[3]; self.ab = R[1] + R[2]
            self.rd = self.srcc + self.ab
        elif op.startswith('v_'):
            self.kind = 'valu'
            if op.startswith('v_permlane') or op.startswith('v_swap'):
                self.wr = R[0] + R[1]; self.rd = R[0] + R[1]
                if op.startswith('v_permlane'):
                    self.kind = 'perm'
            elif op.startswith('v_cmp'):
                self.wr = R[0]; self.rd = sum(R[1:], [])
            elif op.startswith('v_readfirstlane') or op.startswith('v_readlane'):
                self.kind = 'rdlane'
                self.wr = R[0]; self.rd = sum(R[1:], [])
            elif op.startswith('v_add_co') or op.startswith('v_sub_co') or op.startswith('v_addc_co'):
                self.wr = R[0] + R[1]; self.rd = sum(R[2:], [])
            else:
                self.wr = R[0]; self.rd = sum(R[1:], [])
                if op.startswith('v_fmac') or op.startswith('v_dot2c') or self.dpp:
                    self.rd = self.rd + R[0]
                if op.startswith('v_cndmask') and len(ops) == 3:
                    self.rd = self.rd + regs_of('vcc')
                if re.sub(r'_e(32|64)$', '', op) in TRANS:
                    self.kind = 'trans'
        elif op.startswith('buffer_') or op.startswith('global_'):
            self.kind = 'vmem'
            islds = ' lds' in (' ' + mods)
            if op.startswith('buffer_load') and not islds:
                self.wr = R[0]; self.rd = sum(R[1:], [])
            elif op.startswith('buffer_load'):
                self.rd = sum(R, []) + regs_of('m0'); self.kind = 'dma'
            elif op.startswith('buffer_store') or op.startswith('buffer_atomic'):
                self.rd = sum(R, [])
                if 'x4' in op or 'x3' in op:
                    self.stdata = R[0]
            else:
                raise ValueError('unhandled vmem ' + text)
        elif op.startswith('ds_'):
            self.kind = 'ds'
            if op.startswith('ds_read'):
                self.wr = R[0]; self.rd = sum(R[1:], [])
            else:
                self.rd = sum(R, [])
        elif op.startswith('s_'):
            self.kind = 'salu'
            if op.startswith(('s_cmp', 's_cbranch', 's_branch', 's_waitcnt', 's_barrier', 's_sleep', 's_endpgm', 's_setprio', 's_bitcmp')):
                self.rd = sum(R, [])
            else:
                self.wr = R[0] if R else []
                self.rd = sum(R[1:], [])
        else:
            self.kind = 'other'


VALUISH = ('valu', 'trans', 'perm', 'rdlane')


def need(prev, cur):
    n = 0
    pw = set(prev.wr)
    if prev.kind == 'mfma':
        if cur.kind == 'mfma':
            if pw & set(cur.ab):
                n = max(n, 8)
            if pw & set(cur.srcc):
                if cur.srcc != prev.wr or cur.op != prev.op:
                    n = max(n, 6)
            elif pw & set(cur.wr):
                n = max(n, 8)
        elif cur.kind in VALUISH or cur.kind in ('vmem', 'ds', 'dma'):
            if pw & (set(cur.rd) | set(cur.wr)):
                n = max(n, 8)
            if cur.kind in VALUISH and set(prev.srcc) & set(cur.wr):
                n = max(n, 3)
    elif prev.kind in VALUISH:
        vw = {r for r in pw if r[0] in 'va'}
        sw = {r for r in pw if r[0] == 's'}
        if cur.kind == 'mfma' and vw & set(cur.rd):
            n = max(n, 2)
        if cur.kind == 'perm' and vw & set(cur.rd):
            n = max(n, 2)
        if cur.dpp and vw & set(cur.rd):
            n = max(n, 2)
        if cur.kind == 'rdlane' and vw & set(cur.rd):
            n = max(n, 1)
        if prev.kind == 'trans' and (cur.kind in VALUISH or cur.kind in ('vmem', 'ds')) and vw & set(cur.rd):
            n = max(n, 1)
        if sw:
            if cur.kind in VALUISH and sw & set(cur.rd):
                n = max(n, 4 if cur.kind == 'rdlane' else 2)
            if cur.kind in ('vmem', 'dma') and sw & set(cur.rd):
                n = max(n, 5)
            if cur.kind == 'salu' and sw & set(cur.rd) and prev.kind == 'rdlane':
                n = max(n, 1)
    elif prev.kind == 'vmem' and prev.stdata:
        if set(prev.stdata) & set(cur.wr):
            n = max(n, 2)
    elif prev.kind == 'salu':
        if ('s', 124) in pw and cur.kind == 'dma':
            n = max(n, 1)
    return n


class Asm:
    def __init__(self):
        self.lines = []
        self.nlabel = 0

    def __call__(self, text):
        for ln in text.split('\n'):
            ln = ln.strip()
            if not ln:
                continue
            if ln.endswith(':') or ln.startswith('.') or ln.startswith(';'):
                self.lines.append(ln)
            else:
                self.lines.append(Ins(ln))

    def label(self, base='L'):
        self.nlabel += 1
        return '%s_%d' % (base, self.nlabel)

    def render(self):
        out = []
        hist = []
        npad = 0
        for it in self.lines:
            if isinstance(it, str):
                out.append(it if (it.endswith(':') or it.startswith('.')) else '    ' + it)
                continue
            dist = 0
            pad = 0
            for p in reversed(hist[-10:]):
                n = need(p, it)
                if n > dist:
                    pad = max(pad, n - dist)
                dist += p.states
                if dist >= 8:
                    break
            if pad:
                nop = Ins('s_nop %d' % (pad - 1))
                out.append('    ' + nop.text)
                hist.append(nop)
                npad += 1
            out.append('    ' + it.text)
            hist.append(it)
        return '\n'.join(out) + '\n', npad


def magic(d, nmax):
    for s in range(1, 24):
        m = -(-(1 << s) // d)
        if all((x * m) >> s == x // d for x in range(nmax)) and (nmax * m) < (1 << 32):
            return m, s
    raise ValueError
```

```python
from gen import *
from roles import Cnt, f2h

SM = 'v_smfmac_f32_16x16x64_bf16'
MF = 'v_mfma_f32_16x16x32_bf16'
MF16 = 'v_mfma_f32_16x16x16_bf16'
RES_W = 24576
NRES = 12
VW0 = 128

vIDX, vAOFF, vRES, vTW1, vTW2, vTRD = 1, 2, 3, 4, 5, 6
vT0, vT1, vT2, vT3 = 16, 17, 18, 19
vSENT = 20
vA = 40
vSTG = 104
sCUR = 80
sSL = 90
sMS, sLDSW, sSO, sKS = 70, 71, 72, 73


class Ops:
    def __init__(self, order):
        self.order = order
        self.loc = {}
        nv = na = nr = 0
        for i, key in enumerate(order):
            if i % 5 == 4:
                self.loc[key] = ('r', nr); nr += 1
            elif na < 32:
                self.loc[key] = ('a', na * 8); na += 1
            else:
                self.loc[key] = ('v', VW0 + nv * 8); nv += 1
        assert nr == NRES and nv == 16 and na == 32

    def load_dst(self, key, off):
        k, r = self.loc[key]
        if k == 'a':
            return A(r + off, 2)
        if k == 'v':
            return V(r + off, 2)
        return V(32 + r * 8 + off, 2)

    def operand(self, key):
        k, r = self.loc[key]
        if k == 'a':
            return A(r, 8)
        if k == 'v':
            return V(r, 8)
        return V(vSTG + (r % 2) * 8, 8)


def stage_read(g, lg, r):
    for h in range(2):
        g.a('ds_read_b128 %s, v%d offset:%d' % (V(vSTG + (r % 2) * 8 + 4 * h, 4), vRES, r * 2048 + h * 1024))
    lg.issue(('res', r), 2)


def smf(g, lg, ops, key, acc, areg):
    k, r = ops.loc[key]
    if k == 'r' and r >= 2:
        lg.wait(('res', r))
    g.a('%s %s, %s, %s, v%d' % (SM, V(acc, 4), V(areg, 4), ops.operand(key), vIDX))
    if k == 'r' and r + 2 < NRES:
        stage_read(g, lg, r + 2)


def pv_common_setup(g, vN, vG, vR, vC, tp_base_sgpr):
    a = g.a
    g.lane_fields(vN, vG, vR, vC)
    a('v_and_b32 v%d, 8, v0' % vT0)
    a('v_cmp_eq_u32 vcc, 0, v%d' % vT0)
    a('v_mov_b32 v%d, 0xeeee' % vT0)
    a('v_mov_b32 v%d, 0x4444' % vT1)
    a('v_cndmask_b32 v%d, v%d, v%d, vcc' % (vIDX, vT0, vT1))
    a('v_lshlrev_b32 v%d, 4, v0' % vAOFF)
    a('s_mul_i32 s%d, s%d, %d' % (sT, sW, RES_W))
    a('v_add_u32 v%d, s%d, v%d' % (vRES, sT, vAOFF))
    a('v_and_b32 v%d, 1, v%d' % (vT0, vG))
    a('v_lshlrev_b32 v%d, 3, v%d' % (vT0, vT0))
    a('v_lshl_add_u32 v%d, v%d, 4, v%d' % (vT0, vN, vT0))
    a('v_add_u32 v%d, s%d, v%d' % (vT0, tp_base_sgpr, vT0))
    a('v_lshrrev_b32 v%d, 5, v0' % vT1)
    a('v_lshl_add_u32 v%d, v%d, 8, v%d' % (vTW1, vT1, vT0))
    a('v_lshl_add_u32 v%d, v%d, 2, v%d' % (vTW2, vT1, vT0))
    a('v_add_u32 v%d, 512, v%d' % (vTW2, vTW2))
    for i in range(4):
        a('v_mov_b32 v%d, -1' % (vSENT + i))
    a('s_mul_i32 s%d, s%d, 3' % (sKS, sW))
    for j in range(10):
        a('s_add_u32 s%d, s%d, %d' % (sT, sKS, j))
        a('s_cmp_ge_u32 s%d, 10' % sT)
        a('s_cselect_b32 s%d, 10, 0' % (sSL + j))
        a('s_sub_u32 s%d, s%d, s%d' % (sT, sT, sSL + j))
        a('s_lshl_b32 s%d, s%d, 10' % (sSL + j, sT))


def proj_loader_setup(g, vG, vR, vC, vWOFF, vTRS):
    a = g.a
    for ph in range(3):
        a('v_add_u32 v%d, %d, v0' % (vT0, 64 * ph))
        g.divmod_v(vT1, vT2, vT0, 6, 192)
        a('v_mul_u32_u24 v%d, 12288, v%d' % (vT1, vT1))
        a('v_lshl_add_u32 v%d, v%d, 4, v%d' % (vWOFF + ph, vT2, vT1))
    a('s_mul_i32 s%d, s%d, 384' % (sT, sIDX))
    a('s_mul_i32 s%d, s%d, 96' % (sSO, sW))
    a('s_add_u32 s%d, s%d, s%d' % (sT, sT, sSO))
    for ph in range(3):
        a('v_add_u32 v%d, s%d, v%d' % (vWOFF + ph, sT, vWOFF + ph))
    sparse_row(g, vT0, vG, vR)
    a('v_mul_u32_u24 v%d, 96, v%d' % (vT0, vT0))
    a('v_lshl_add_u32 v%d, v%d, 3, v%d' % (vTRS, vC, vT0))
    a('v_add_u32 v%d, s%d, v%d' % (vTRS, sLDSW, vTRS))


def sparse_row(g, dst, vG, vR):
    a = g.a
    a('v_lshrrev_b32 v%d, 1, v%d' % (dst, vG))
    a('v_lshlrev_b32 v%d, 4, v%d' % (dst, dst))
    a('v_lshrrev_b32 v%d, 1, v%d' % (vT1, vR))
    a('v_lshl_add_u32 v%d, v%d, 3, v%d' % (dst, vT1, dst))
    a('v_and_b32 v%d, 1, v%d' % (vT1, vG))
    a('v_lshl_add_u32 v%d, v%d, 2, v%d' % (dst, vT1, dst))
    a('v_and_b32 v%d, 1, v%d' % (vT1, vR))
    a('v_add_u32 v%d, v%d, v%d' % (dst, dst, vT1))


def proj_chunks(g, ops, srd, names, vWOFF, vTRS):
    a = g.a
    out = []
    for j in range(10):
        for R in range(2):
            def issue(buf, j=j, R=R):
                a('s_mul_i32 s%d, s%d, 768' % (sSO, sSL + j))
                if R:
                    a('s_add_u32 s%d, s%d, %d' % (sSO, sSO, 32 * 12288))
                for ph in range(3):
                    g.dma(vWOFF + ph, srd, sSO, sLDSW, buf * 3072 + ph * 1024)

            def reads(buf, j=j, R=R):
                for T in range(3):
                    for h2 in range(2):
                        a('ds_read_b64_tr_b16 %s, v%d offset:%d' % (ops.load_dst((names[T], j), R * 4 + h2 * 2), vTRS, buf * 3072 + h2 * 192 + T * 32))
            out.append((issue, 3, reads))
    return out


def store_residents(g):
    a = g.a
    a('s_barrier')
    for r in range(NRES):
        for h in range(2):
            a('ds_write_b128 v%d, %s offset:%d' % (vRES, V(32 + r * 8 + 4 * h, 4), r * 2048 + h * 1024))
    a('s_waitcnt lgkmcnt(0)')


def set_cur(g):
    a = g.a
    a('s_and_b32 s%d, s%d, 3' % (sMS, sSEG))
    a('s_lshl_b32 s%d, s%d, 14' % (sMS, sMS))
    a('s_add_u32 s%d, s%d, 0x%x' % (sMS, sMS, MEMBOX))
    for j in range(10):
        a('s_add_u32 s%d, s%d, s%d' % (sCUR + j, sMS, sSL + j))


def mem_load(g, j):
    g.a('buffer_load_dwordx4 %s, v%d, %s, s%d offen sc1' % (V(vA + 4 * j, 4), vAOFF, S4(R_WS), sCUR + j))


def check_regs(g, regs, tmp):
    a = g.a
    regs = list(regs)
    a('v_max3_u32 v%d, v%d, v%d, v%d' % (tmp, regs[0], regs[1], regs[2]))
    rest = regs[3:]
    while len(rest) >= 2:
        a('v_max3_u32 v%d, v%d, v%d, v%d' % (tmp, tmp, rest[0], rest[1]))
        rest = rest[2:]
    if rest:
        a('v_max_u32 v%d, v%d, v%d' % (tmp, tmp, rest[0]))
    a('v_cmp_eq_u32 vcc, -1, v%d' % tmp)


def poll_mem(g):
    a = g.a
    l, d = a.label('L_pm'), a.label('L_pmd')
    a(l + ':')
    for j in range(3):
        mem_load(g, j)
    a('s_waitcnt vmcnt(0)')
    check_regs(g, range(vA, vA + 12), vT0)
    a('s_cbranch_vccz ' + d)
    g.spin_check()
    a('s_branch ' + l)
    a(d + ':')
    for j in range(3, 10):
        mem_load(g, j)


def slot_ready(g, j, retries):
    a = g.a
    c, r = a.label('L_sc'), a.label('L_sr')
    a(c + ':')
    a('s_waitcnt vmcnt(%d)' % (9 - j))
    check_regs(g, range(vA + 4 * j, vA + 4 * j + 4), vT0)
    a('s_cbranch_vccnz ' + r)
    retries.append((r, c, j))


def emit_retries(g, retries):
    a = g.a
    for r, c, j in retries:
        a(r + ':')
        g.spin_check()
        for jj in range(j, 10):
            mem_load(g, jj)
        a('s_branch ' + c)


def post_pair(g, lg, X, Y, waddr, off, tag):
    a = g.a
    for r in range(4):
        a('v_permlane32_swap_b32 v%d, v%d' % (X + r, Y + r))
    for r in range(4):
        a('v_add_f32 v%d, v%d, v%d' % (X + r, X + r, Y + r))
    a('v_cvt_pk_bf16_f32 v%d, v%d, v%d' % (Y, X, X + 1))
    a('v_cvt_pk_bf16_f32 v%d, v%d, v%d' % (Y + 1, X + 2, X + 3))
    a('ds_write_b64 v%d, %s offset:%d' % (waddr, V(Y, 2), off))
    lg.issue(tag)


def post_single(g, lg, X, waddr, off, tag):
    a = g.a
    a('v_permlane32_swap_b32 v%d, v%d' % (X, X + 2))
    a('v_permlane32_swap_b32 v%d, v%d' % (X + 1, X + 3))
    a('v_add_f32 v%d, v%d, v%d' % (X, X, X + 2))
    a('v_add_f32 v%d, v%d, v%d' % (X + 1, X + 1, X + 3))
    a('v_cvt_pk_bf16_f32 v%d, v%d, v%d' % (X, X, X + 1))
    a('ds_write_b32 v%d, v%d offset:%d' % (waddr, X, off))
    lg.issue(tag)


def xred(g, op, x, t, which=(32, 16)):
    a = g.a
    for wdt in which:
        a('v_mov_b32 v%d, v%d' % (t, x))
        a('v_permlane%d_swap_b32 v%d, v%d' % (wdt, x, t))
        a('%s v%d, v%d, v%d' % (op, x, x, t))


def role_p(g):
    a = g.a
    nseg = g.o.get('nseg', NSEG)
    vSW, vSR, vSXR, vPST4, vPST2, vXST4, vXST2, vFLK, vFLQ = 7, 8, 9, 10, 11, 12, 13, 14, 15
    vNEG, vM1, vL1, vF = 24, 25, 26, 27
    vKX, vQ, vK, vQT, vKT = 28, 80, 92, 120, vSTG
    sC, sPS, sKX, sQX, sPX, sNEED, sTP, sMASK = 74, 75, 76, 77, 78, 79, 69, 44
    TP, SB1, SB2, SXB = 98304, 106496, 114688, 118784
    order = []
    for j in range(10):
        order += [('q0', j), ('q1', j), ('q2', j), ('k2', j)]
    for j in range(10):
        order += [('k0', j), ('k1', j)]
    ops = Ops(order)
    accof = {'q0': vQ, 'q1': vQ + 4, 'q2': vQ + 8, 'k0': vK, 'k1': vK + 4, 'k2': vK + 8}
    vN, vG, vR, vC, vFIRST, vWOFF, vTRS = 7, 8, 9, 10, 11, 12, 15
    a('L_P:')
    g.srd(R_W1, P_WQ, 640 * 12288)
    g.srd(R_W2, P_WK, 640 * 12288)
    a('s_lshl_b32 s%d, s%d, 11' % (sTP, sW))
    a('s_add_u32 s%d, s%d, %d' % (sTP, sTP, TP))
    pv_common_setup(g, vN, vG, vR, vC, sTP)
    a('v_mov_b32 v%d, s%d' % (vT0, sW))
    a('v_lshl_add_u32 v%d, v%d, 6, v0' % (vT0, vT0))
    a('v_cmp_gt_u32 vcc, 40, v%d' % vT0)
    a('v_mov_b32 v%d, 0x%x' % (vT0, OOB))
    a('v_cndmask_b32 v%d, v%d, v%d, vcc' % (vT0, vT0, vAOFF))
    a('s_mul_i32 s%d, s%d, 640' % (sPS, sIDX))
    a('s_add_u32 s%d, s%d, 0x%x' % (sPS, sPS, PBOX))
    for sl in range(4):
        a('s_add_u32 s%d, s%d, %d' % (sT, sPS, sl * PSTR))
        a('buffer_store_dwordx4 %s, v%d, %s, s%d offen sc1' % (V(vSENT, 4), vT0, S4(R_WS), sT))
    g.first_lane_off(vFIRST, 0)
    g.arrive(vFIRST, vT0)
    a('s_mul_i32 s%d, s%d, 40960' % (sLDSW, sW))
    proj_loader_setup(g, vG, vR, vC, vWOFF, vTRS)
    a('v_lshl_add_u32 v%d, v%d, 2, v%d' % (vT0, vG, vR))
    a('v_and_b32 v%d, 1, v%d' % (vT1, vC))
    a('v_lshlrev_b32 v%d, 3, v%d' % (vT1, vT1))
    a('v_lshl_add_u32 v%d, v%d, 4, v%d' % (vT0, vT0, vT1))
    a('v_add_u32 v%d, s%d, v%d' % (vTRD, sTP, vT0))
    chunks = proj_chunks(g, ops, R_W1, ('q0', 'q1', 'q2'), vWOFF, vTRS) + proj_chunks(g, ops, R_W2, ('k0', 'k1', 'k2'), vWOFF, vTRS)
    g.weight_pipeline(chunks, 13)
    store_residents(g)
    a('v_mov_b32 v%d, v%d' % (vT2, vN))
    a('v_mov_b32 v%d, v%d' % (vT3, vG))
    n_, g_ = vT2, vT3
    a('s_and_b32 s%d, s%d, 1' % (sT, sW))
    a('s_lshl_b32 s%d, s%d, 4' % (sT, sT))
    a('v_lshlrev_b32 v%d, 2, v%d' % (vT0, g_))
    a('v_sub_u32 v%d, v%d, v%d' % (vT0, n_, vT0))
    a('v_add_u32 v%d, s%d, v%d' % (vT0, sT, vT0))
    for T in range(2):
        for r in range(4):
            m = sMASK + (T * 4 + r) * 2
            a('v_cmp_le_i32 s[%d:%d], %d, v%d' % (m, m + 1, 16 * T + r, vT0))
    a('s_lshl_b32 s%d, s%d, 11' % (sT, sW))
    a('s_add_u32 s%d, s%d, %d' % (sT, sT, SB1))
    a('v_add_u32 v%d, s%d, v%d' % (vSW, sT, vAOFF))
    a('v_add_u32 v%d, %d, v%d' % (vSR, SB1, vAOFF))
    a('s_and_b32 s%d, s%d, 1' % (sT, sW))
    a('s_mul_i32 s%d, s%d, 3072' % (sT, sT))
    a('s_add_u32 s%d, s%d, %d' % (sT, sT, SXB))
    a('v_add_u32 v%d, s%d, v%d' % (vSXR, sT, vAOFF))
    a('v_mov_b32 v%d, s%d' % (vT0, sW))
    a('v_lshl_add_u32 v%d, v%d, 4, v%d' % (vT0, vT0, n_))
    a('v_cmp_gt_u32 vcc, 8, v%d' % vT0)
    a('v_lshlrev_b32 v%d, 4, v%d' % (vT1, n_))
    a('v_lshl_add_u32 v%d, v%d, 7, v%d' % (vT1, g_, vT1))
    a('v_mov_b32 v%d, 0x%x' % (vNEG, OOB))
    a('v_cndmask_b32 v%d, v%d, v%d, vcc' % (vPST4, vNEG, vT1))
    a('v_lshrrev_b32 v%d, 1, v%d' % (vT1, g_))
    a('v_lshl_add_u32 v%d, v%d, 4, v%d' % (vT0, vT1, vT0))
    a('v_cmp_gt_u32 vcc, 8, v%d' % vT0)
    a('v_lshlrev_b32 v%d, 3, v%d' % (vT1, n_))
    a('v_lshl_add_u32 v%d, v%d, 6, v%d' % (vT1, g_, vT1))
    a('v_add_u32 v%d, 512, v%d' % (vT1, vT1))
    a('v_cndmask_b32 v%d, v%d, v%d, vcc' % (vPST2, vNEG, vT1))
    a('s_cmp_lt_u32 s%d, 2' % sW)
    a('s_cselect_b32 s%d, 0, 0x%x' % (sNEED, OOB))
    a('s_lshl_b32 s%d, s%d, 10' % (sT, sW))
    a('s_or_b32 s%d, s%d, s%d' % (sT, sT, sNEED))
    a('v_add_u32 v%d, s%d, v%d' % (vXST4, sT, vAOFF))
    a('s_lshl_b32 s%d, s%d, 8' % (sT, sW))
    a('s_add_u32 s%d, s%d, 2048' % (sT, sT))
    a('s_or_b32 s%d, s%d, s%d' % (sT, sT, sNEED))
    a('v_lshlrev_b32 v%d, 4, v%d' % (vT1, n_))
    a('v_lshl_add_u32 v%d, v%d, 3, v%d' % (vT1, g_, vT1))
    a('v_add_u32 v%d, s%d, v%d' % (vT1, sT, vT1))
    a('v_cmp_gt_u32 vcc, 2, v%d' % g_)
    a('v_cndmask_b32 v%d, v%d, v%d, vcc' % (vXST2, vNEG, vT1))
    a('s_add_u32 s%d, s%d, %d' % (sT, sIDX, F_K))
    a('s_lshl_b32 s%d, s%d, 7' % (sT, sT))
    a('v_mov_b32 v%d, s%d' % (vFLK, sT))
    a('s_add_u32 s%d, s%d, %d' % (sT, sIDX, F_Q))
    a('s_lshl_b32 s%d, s%d, 7' % (sT, sT))
    a('v_mov_b32 v%d, s%d' % (vFLQ, sT))
    a('v_mov_b32 v%d, %s' % (vNEG, f2h(-3.0e38)))
    a('v_mov_b32 v%d, 0' % (vQT + 6))
    a('v_mov_b32 v%d, 0' % (vQT + 7))
    a('s_mov_b32 s%d, %s' % (sC, f2h(192 ** -0.5 * 1.4426950408889634)))
    a('s_lshl_b32 s%d, s%d, 2' % (sT, sIDX))
    a('s_add_u32 s%d, s%d, s%d' % (sT, sT, sW))
    a('s_mul_i32 s%d, s%d, 3072' % (sT, sT))
    a('s_add_u32 s%d, s%d, 0x%x' % (sKX, sT, KX))
    a('s_add_u32 s%d, s%d, 0x%x' % (sQX, sT, QX))
    a('s_mul_i32 s%d, s%d, 2560' % (sPX, sIDX))
    a('s_add_u32 s%d, s%d, 0x%x' % (sPX, sPX, PX))
    g.wait_start(vT0, vT1)

    def load3(dst, soff):
        for pc in range(3):
            a('buffer_load_dwordx4 %s, v%d, %s, s%d offen offset:%d sc1' % (V(dst + 4 * pc, 4), vAOFF, S4(R_WS), soff, 1024 * pc))

    def prep_step():
        a('s_add_u32 s%d, s%d, 1' % (sNEED, sSEG))
        g.wait_flag(vT0, vFLK, sNEED)
        for pc in range(3):
            a('buffer_load_dwordx4 %s, v%d, %s, s%d offen offset:%d sc1' % (V(vKX + (4, 8, 0)[pc], 4), vAOFF, S4(R_WS), sKX, 1024 * pc))
        a('s_add_u32 s%d, s%d, %d' % (sKX, sKX, 32 * 12288))
        for i in range(24):
            a('v_mov_b32 v%d, 0' % (vQ + i))
        for r in range(2):
            for h in range(2):
                a('ds_read_b128 %s, v%d offset:%d' % (V(vSTG + r * 8 + 4 * h, 4), vRES, r * 2048 + h * 1024))
        set_cur(g)
        a('s_waitcnt lgkmcnt(0)')
    prep_step()
    lp = a.label('L_p_loop')
    a(lp + ':')
    retries = []
    lg = Cnt(a, 'lgkmcnt', 15)
    poll_mem(g)
    for i in range(40):
        key = order[i]
        if i % 4 == 0 and key[1] >= 3:
            slot_ready(g, key[1], retries)
        smf(g, lg, ops, key, accof[key[0]], vA + 4 * key[1])
    kops = order[40:]

    def kop(n):
        for _ in range(n):
            key = kops.pop(0)
            smf(g, lg, ops, key, accof[key[0]], vA + 4 * key[1])
    kop(3)
    post_pair(g, lg, vQ, vQ + 4, vTW1, 0, 'qw1')
    kop(2)
    post_single(g, lg, vQ + 8, vTW2, 0, 'qw2')
    kop(1)
    post_single(g, lg, vK + 8, vTW2, 768, 'kw2')
    kop(2)
    lg.wait('qw2')
    for T in range(3):
        a('ds_read_b64_tr_b16 %s, v%d offset:%d' % (V(vQT + 2 * T, 2), vTRD, T * 256))
    lg.issue('qt', 3)
    kop(5)
    lg.wait('qt')
    for X in range(2):
        a('%s %s, %s, %s, 0' % (MF, V(vQ + 4 * X, 4), V(vKX + 4 + 4 * X, 4), V(vQT, 4)))
    for X in range(2):
        a('%s %s, %s, %s, %s' % (MF, V(vQ + 4 * X, 4), V(vKX + 2 * X, 4), V(vQT + 4, 4), V(vQ + 4 * X, 4)))
    kop(4)
    for X in range(2):
        a('ds_write_b128 v%d, %s offset:%d' % (vSW, V(vQ + 4 * X, 4), X * 1024))
    lg.issue('sw', 2)
    kop(3)
    assert not kops
    lg.wait_all()
    a('s_barrier')
    for X in range(2):
        for src in range(4):
            a('ds_read_b128 %s, v%d offset:%d' % (V(vA + (X * 4 + src) * 4, 4), vSR, src * 2048 + X * 1024))
            lg.issue(('sr', X, src))
    post_pair(g, lg, vK, vK + 4, vTW1, 768, 'kw1')
    lg.wait('kw1')
    for T in range(3):
        a('ds_read_b64_tr_b16 %s, v%d offset:%d' % (V(vKT + (2, 4, 0)[T], 2), vTRD, 768 + T * 256))
    lg.issue('kt', 3)
    S0, S1 = vA, vA + 16
    for b in (S0, S1):
        for r in range(4):
            a('v_add_f32 v%d, v%d, v%d' % (b + r, b + r, b + 4 + r))
            a('v_add_f32 v%d, v%d, v%d' % (b + 8 + r, b + 8 + r, b + 12 + r))
    lg.wait('kt')
    a('%s %s, %s, %s, 0' % (MF, V(vK, 4), V(vKT + 2, 4), V(vQT, 4)))
    a('%s %s, %s, %s, %s' % (MF, V(vK, 4), V(vKT, 4), V(vQT + 4, 4), V(vK, 4)))
    for b in (S0, S1):
        for r in range(4):
            a('v_add_f32 v%d, v%d, v%d' % (b + r, b + r, b + 8 + r))
    a('v_max3_f32 v%d, v%d, v%d, v%d' % (vM1, S0, S0 + 1, S0 + 2))
    a('v_max3_f32 v%d, v%d, v%d, v%d' % (vM1, vM1, S0 + 3, S1))
    a('s_lshl_b32 s%d, s%d, 10' % (sT, sW))
    a('v_add_u32 v%d, s%d, v%d' % (vT1, sT, vSR))
    a('ds_write_b128 v%d, %s offset:%d' % (vT1, V(vK, 4), SB2 - SB1))
    lg.issue('mw')
    a('v_max3_f32 v%d, v%d, v%d, v%d' % (vM1, vM1, S1 + 1, S1 + 2))
    a('v_max_f32 v%d, v%d, v%d' % (vM1, vM1, S1 + 3))
    lg.wait_all()
    a('s_barrier')
    MM = vA + 4
    mmr = (vA + 4, vA + 8, vA + 12, vA + 32)
    for src in range(4):
        a('ds_read_b128 %s, v%d offset:%d' % (V(mmr[src], 4), vSR, SB2 - SB1 + src * 1024))
    lg.issue('mr', 4)
    xred(g, 'v_max_f32', vM1, vT0)
    a('v_mul_f32 v%d, s%d, v%d' % (vT2, sC, vM1))
    for b in (S0, S1):
        for r in range(4):
            a('v_fma_f32 v%d, v%d, s%d, -v%d' % (b + r, b + r, sC, vT2))
    for b in (S0, S1):
        for r in range(4):
            a('v_exp_f32 v%d, v%d' % (b + r, b + r))
    lg.wait('mr')
    for r in range(4):
        a('v_add_f32 v%d, v%d, v%d' % (mmr[0] + r, mmr[0] + r, mmr[1] + r))
        a('v_add_f32 v%d, v%d, v%d' % (mmr[2] + r, mmr[2] + r, mmr[3] + r))
    for r in range(4):
        a('v_add_f32 v%d, v%d, v%d' % (MM + r, mmr[0] + r, mmr[2] + r))
    a('v_max3_f32 v%d, v%d, v%d, v%d' % (vT3, MM, MM + 1, MM + 2))
    a('v_max_f32 v%d, v%d, v%d' % (vT3, vT3, MM + 3))
    a('v_add_f32 v%d, v%d, v%d' % (vL1, S0, S0 + 1))
    a('v_add_f32 v%d, v%d, v%d' % (vF, S0 + 2, S0 + 3))
    xred(g, 'v_max_f32', vT3, vT0, (16,))
    a('v_add_f32 v%d, v%d, v%d' % (vL1, vL1, S1))
    a('v_add_f32 v%d, v%d, v%d' % (vF, vF, S1 + 1))
    a('v_max_f32 v%d, v%d, v%d' % (vT3, vT3, vM1))
    a('v_add_f32 v%d, v%d, v%d' % (vL1, vL1, S1 + 2))
    a('v_add_f32 v%d, v%d, v%d' % (vF, vF, S1 + 3))
    a('v_mul_f32 v%d, s%d, v%d' % (vT3, sC, vT3))
    a('v_add_f32 v%d, v%d, v%d' % (vL1, vL1, vF))
    a('v_sub_f32 v%d, v%d, v%d' % (vF, vT2, vT3))
    for r in range(4):
        a('v_fma_f32 v%d, v%d, s%d, -v%d' % (MM + r, MM + r, sC, vT3))
    a('v_exp_f32 v%d, v%d' % (vF, vF))
    for r in range(4):
        a('v_exp_f32 v%d, v%d' % (MM + r, MM + r))
    a('v_mul_f32 v%d, v%d, v%d' % (vL1, vL1, vF))
    a('v_add_f32 v%d, v%d, v%d' % (vT1, MM, MM + 1))
    a('v_add_f32 v%d, v%d, v%d' % (vT2, MM + 2, MM + 3))
    a('v_add_f32 v%d, v%d, v%d' % (vT1, vT1, vT2))
    a('v_fma_f32 v%d, v%d, 0.5, v%d' % (vL1, vT1, vL1))
    xred(g, 'v_add_f32', vL1, vT0)
    a('v_rcp_f32 v%d, v%d' % (vL1, vL1))
    a('v_mul_f32 v%d, v%d, v%d' % (vF, vF, vL1))
    for r in range(4):
        a('v_mul_f32_e64 v%d, v%d, v%d clamp' % (MM + r, MM + r, vL1))
    for b in (S0, S1):
        for r in range(4):
            a('v_mul_f32_e64 v%d, v%d, v%d clamp' % (b + r, b + r, vF))
    PK = vA + 20
    a('v_cvt_pk_bf16_f32 v%d, v%d, v%d' % (PK, S0, S0 + 1))
    a('v_cvt_pk_bf16_f32 v%d, v%d, v%d' % (PK + 2, S0 + 2, S0 + 3))
    a('v_cvt_pk_bf16_f32 v%d, v%d, v%d' % (PK + 1, S1, S1 + 1))
    a('v_cvt_pk_bf16_f32 v%d, v%d, v%d' % (PK + 3, S1 + 2, S1 + 3))
    a('v_cvt_pk_bf16_f32 v%d, v%d, v%d' % (PK + 4, MM, MM + 1))
    a('v_cvt_pk_bf16_f32 v%d, v%d, v%d' % (PK + 5, MM + 2, MM + 3))
    a('s_and_b32 s%d, s%d, 3' % (sT, sSEG))
    a('s_lshl_b32 s%d, s%d, 15' % (sT, sT))
    a('s_add_u32 s%d, s%d, s%d' % (sT, sT, sPS))
    a('v_permlane16_swap_b32 v%d, v%d' % (PK, PK + 2))
    a('v_permlane16_swap_b32 v%d, v%d' % (PK + 1, PK + 3))
    a('v_permlane16_swap_b32 v%d, v%d' % (PK + 4, PK + 5))
    a('buffer_store_dwordx4 %s, v%d, %s, s%d offen sc1' % (V(PK, 4), vPST4, S4(R_WS), sT))
    a('buffer_store_dwordx2 %s, v%d, %s, s%d offen sc1' % (V(PK + 4, 2), vPST2, S4(R_WS), sT))
    a('s_add_u32 s%d, s%d, 3' % (sT, sSEG))
    a('s_and_b32 s%d, s%d, 3' % (sT, sT))
    a('s_lshl_b32 s%d, s%d, 15' % (sT, sT))
    a('s_add_u32 s%d, s%d, s%d' % (sT, sT, sPS))
    a('buffer_store_dwordx4 %s, v%d, %s, s%d offen sc1' % (V(vSENT, 4), vPST4, S4(R_WS), sT))
    a('buffer_store_dwordx2 %s, v%d, %s, s%d offen sc1' % (V(vSENT, 2), vPST2, S4(R_WS), sT))
    a('s_add_u32 s%d, s%d, 1' % (sNEED, sSEG))
    g.wait_flag(vT0, vFLQ, sNEED)
    vQX = vA + 28
    load3(vQX, sQX)
    a('s_add_u32 s%d, s%d, %d' % (sQX, sQX, 32 * 12288))
    a('s_waitcnt vmcnt(0)')
    for half in range(2):
        for kt in range(3):
            acc = V(vQ + (half * 3 + kt) * 4, 4)
            a32 = V(vKT + 2, 4) if kt == 0 else V(vKX + 4 * kt, 4)
            a('%s %s, %s, %s, 0' % (MF, acc, a32, V(vQX + 4 * half, 4)))
    for half in range(2):
        for kt in range(3):
            acc = V(vQ + (half * 3 + kt) * 4, 4)
            a16 = V(vKT, 2) if kt == 0 else V(vKX + 2 * (kt - 1), 2)
            a('%s %s, %s, %s, %s' % (MF16, acc, a16, V(vQX + 8 + 2 * half, 2), acc))
    a('s_mul_i32 s%d, s%d, 6144' % (sT, sW))
    a('s_add_u32 s%d, s%d, %d' % (sT, sT, SXB))
    a('v_add_u32 v%d, s%d, v%d' % (vT1, sT, vAOFF))
    for it in range(6):
        a('ds_write_b128 v%d, %s offset:%d' % (vT1, V(vQ + it * 4, 4), it * 1024))
    a('s_waitcnt lgkmcnt(0)')
    a('s_barrier')
    for kt in range(3):
        for src in range(4):
            a('ds_read_b128 %s, v%d offset:%d' % (V(vA + (kt * 4 + src) * 4, 4), vSXR, src * 6144 + kt * 1024))
    B = [vA + 16 * kt for kt in range(3)]
    for kt in range(3):
        a('s_waitcnt lgkmcnt(%d)' % (8 - 4 * kt))
        b = B[kt]
        for r in range(4):
            a('v_add_f32 v%d, v%d, v%d' % (b + r, b + r, b + 4 + r))
            a('v_add_f32 v%d, v%d, v%d' % (b + 8 + r, b + 8 + r, b + 12 + r))
        for r in range(4):
            a('v_add_f32 v%d, v%d, v%d' % (b + r, b + r, b + 8 + r))
    for T in range(2):
        for r in range(4):
            m = sMASK + (T * 4 + r) * 2
            a('v_cndmask_b32_e64 v%d, v%d, v%d, s[%d:%d]' % (B[1 + T] + r, vNEG, B[1 + T] + r, m, m + 1))
    allr = [B[kt] + r for kt in range(3) for r in range(4)]
    a('v_max3_f32 v%d, v%d, v%d, v%d' % (vM1, allr[0], allr[1], allr[2]))
    for i in range(3, 11, 2):
        a('v_max3_f32 v%d, v%d, v%d, v%d' % (vM1, vM1, allr[i], allr[i + 1]))
    a('v_max_f32 v%d, v%d, v%d' % (vM1, vM1, allr[11]))
    xred(g, 'v_max_f32', vM1, vT0)
    a('v_mul_f32 v%d, s%d, v%d' % (vT2, sC, vM1))
    for r in allr:
        a('v_fma_f32 v%d, v%d, s%d, -v%d' % (r, r, sC, vT2))
    for r in allr:
        a('v_exp_f32 v%d, v%d' % (r, r))
    a('v_add_f32 v%d, v%d, v%d' % (vL1, allr[0], allr[1]))
    a('v_add_f32 v%d, v%d, v%d' % (vF, allr[2], allr[3]))
    a('v_add_f32 v%d, v%d, v%d' % (vL1, vL1, vF))
    a('v_mul_f32 v%d, 0.5, v%d' % (vL1, vL1))
    for r in allr[4:]:
        a('v_add_f32 v%d, v%d, v%d' % (vL1, vL1, r))
    xred(g, 'v_add_f32', vL1, vT0)
    a('v_rcp_f32 v%d, v%d' % (vL1, vL1))
    for r in allr:
        a('v_mul_f32 v%d, v%d, v%d' % (r, r, vL1))
    PX4 = vA + 4
    for T in range(2):
        for p in range(2):
            a('v_cvt_pk_bf16_f32 v%d, v%d, v%d' % (PX4 + T * 2 + p, B[1 + T] + 2 * p, B[1 + T] + 2 * p + 1))
    for p in range(2):
        a('v_cvt_pk_bf16_f32 v%d, v%d, v%d' % (PX4 + 4 + p, B[0] + 2 * p, B[0] + 2 * p + 1))
    a('buffer_store_dwordx4 %s, v%d, %s, s%d offen sc1' % (V(PX4, 4), vXST4, S4(R_WS), sPX))
    a('buffer_store_dwordx2 %s, v%d, %s, s%d offen sc1' % (V(PX4 + 4, 2), vXST2, S4(R_WS), sPX))
    a('s_add_u32 s%d, s%d, %d' % (sPX, sPX, 32 * 2560))
    a('s_add_u32 s%d, s%d, 1' % (sSEG, sSEG))
    fin = a.label('L_p_fin')
    a('s_cmp_ge_u32 s%d, %d' % (sSEG, nseg))
    a('s_cbranch_scc1 ' + fin)
    prep_step()
    a('s_branch ' + lp)
    a(fin + ':')
    a('s_waitcnt vmcnt(0)')
    a('s_barrier')
    for i in range(4):
        a('v_mov_b32 v%d, 0' % (vA + i))
    a('s_add_u32 s%d, s%d, %d' % (sT, sPS, (nseg % 4) * PSTR))
    a('buffer_store_dwordx4 %s, v%d, %s, s%d offen sc1' % (V(vA, 4), vPST4, S4(R_WS), sT))
    a('buffer_store_dwordx2 %s, v%d, %s, s%d offen sc1' % (V(vA, 2), vPST2, S4(R_WS), sT))
    a('s_endpgm')
    emit_retries(g, retries)


def role_v(g):
    a = g.a
    nseg = g.o.get('nseg', NSEG)
    vTRV, vY4, vY2 = 7, 8, 9
    vACC1, vA2 = 80, 92
    sYS, sY2, sTP, sYB = 74, 75, 69, 76
    VT = 98304
    order = []
    for j in range(10):
        order += [('v0', j), ('v1', j), ('v2', j)]
    groups = ((0, 1, 2, 3), (4, 5, 6, 7), (8, 9))
    for grp in groups:
        for ks in range(3):
            order += [('o%d' % t, ks) for t in grp]
    ops = Ops(order)
    vN, vG, vR, vC, vFIRST, vWOFF, vTRS = 24, 25, 26, 27, 11, 12, 15
    vWO2, vTRO = 28, 10
    wo2 = [28, 29, 30, 31, 19]
    a('L_V:')
    g.srd(R_W1, P_WV, 640 * 12288)
    g.srd(R_W2, P_WO, 32 * 245760)
    a('s_mul_i32 s%d, s%d, 768' % (sTP, sW))
    a('s_add_u32 s%d, s%d, %d' % (sTP, sTP, VT))
    pv_common_setup(g, vN, vG, vR, vC, sTP)
    a('s_mul_i32 s%d, s%d, %d' % (sT, sW, 10 * 8192))
    a('s_lshl_b32 s%d, s%d, 8' % (sYB, sIDX))
    a('s_add_u32 s%d, s%d, s%d' % (sT, sT, sYB))
    a('v_lshlrev_b32 v%d, 4, v%d' % (vT0, vN))
    a('v_add_u32 v%d, s%d, v%d' % (vT0, sT, vT0))
    a('v_lshl_add_u32 v%d, v%d, 13, v%d' % (vY4, vG, vT0))
    a('v_lshrrev_b32 v%d, 5, v0' % vT1)
    a('v_lshl_add_u32 v%d, v%d, 13, v%d' % (vY2, vT1, vT0))
    a('v_and_b32 v%d, 1, v%d' % (vT1, vG))
    a('v_lshl_add_u32 v%d, v%d, 3, v%d' % (vY2, vT1, vY2))
    a('v_add_u32 v%d, %d, v%d' % (vY2, 8 * 8192, vY2))

    def clear_slot(s):
        a('buffer_store_dwordx4 %s, v%d, %s, s%d offen sc1' % (V(vSENT, 4), vY4, S4(R_WS), s))
        a('s_add_u32 s%d, s%d, %d' % (sY2, s, 4 * 8192))
        a('buffer_store_dwordx4 %s, v%d, %s, s%d offen sc1' % (V(vSENT, 4), vY4, S4(R_WS), sY2))
        a('buffer_store_dwordx2 %s, v%d, %s, s%d offen sc1' % (V(vSENT, 2), vY2, S4(R_WS), s))
    for sl in range(4):
        a('s_mov_b32 s%d, 0x%x' % (sYS, YBOX + sl * YSTR))
        clear_slot(sYS)
    g.first_lane_off(vFIRST, 0)
    g.arrive(vFIRST, vT0)
    a('s_mul_i32 s%d, s%d, 40960' % (sLDSW, sW))
    proj_loader_setup(g, vG, vR, vC, vWOFF, vTRS)
    for ph in range(5):
        a('v_add_u32 v%d, %d, v0' % (vT0, 64 * ph))
        g.divmod_v(vT1, vT2, vT0, 20, 640)
        a('v_mul_u32_u24 v%d, 1280, v%d' % (vT1, vT1))
        a('v_lshl_add_u32 v%d, v%d, 4, v%d' % (wo2[ph], vT2, vT1))
    a('s_mul_i32 s%d, s%d, 245760' % (sT, sIDX))
    a('s_mul_i32 s%d, s%d, 320' % (sSO, sW))
    a('s_add_u32 s%d, s%d, s%d' % (sT, sT, sSO))
    for ph in range(5):
        a('v_add_u32 v%d, s%d, v%d' % (wo2[ph], sT, wo2[ph]))
    sparse_row(g, vT0, vG, vR)
    a('v_mul_u32_u24 v%d, 320, v%d' % (vT0, vT0))
    a('v_lshl_add_u32 v%d, v%d, 3, v%d' % (vTRO, vC, vT0))
    a('v_add_u32 v%d, s%d, v%d' % (vTRO, sLDSW, vTRO))
    a('v_lshrrev_b32 v%d, 1, v%d' % (vT0, vC))
    a('v_lshlrev_b32 v%d, 3, v%d' % (vT0, vT0))
    a('v_lshl_add_u32 v%d, v%d, 4, v%d' % (vT0, vG, vT0))
    a('v_add_u32 v%d, v%d, v%d' % (vT0, vT0, vR))
    a('v_and_b32 v%d, 1, v%d' % (vT1, vC))
    a('v_lshlrev_b32 v%d, 3, v%d' % (vT1, vT1))
    a('v_lshl_add_u32 v%d, v%d, 4, v%d' % (vT0, vT0, vT1))
    a('v_add_u32 v%d, %d, v%d' % (vTRV, VT, vT0))
    g.weight_pipeline(proj_chunks(g, ops, R_W1, ('v0', 'v1', 'v2'), vWOFF, vTRS), 13)
    och = []
    for ks in range(3):
        for R in range(2):
            def issue(buf, ks=ks, R=R):
                for hh in range(2):
                    a('s_mov_b32 s%d, %d' % (sSO, (64 * ks + 32 * R + 16 * hh) * 1280))
                    for ph in range(5):
                        g.dma(wo2[ph], R_W2, sSO, sLDSW, buf * 10240 + hh * 5120 + ph * 1024)

            def reads(buf, ks=ks, R=R):
                for t in range(10):
                    for h2 in range(2):
                        a('ds_read_b64_tr_b16 %s, v%d offset:%d' % (ops.load_dst(('o%d' % t, ks), R * 4 + h2 * 2), vTRO, buf * 10240 + h2 * 640 + t * 32))
            och.append((issue, 10, reads))
    g.weight_pipeline(och, 4)
    store_residents(g)
    g.wait_start(vT0, vT1)

    def prep_step():
        for i in range(12):
            a('v_mov_b32 v%d, 0' % (vACC1 + i))
        for r in range(2):
            for h in range(2):
                a('ds_read_b128 %s, v%d offset:%d' % (V(vSTG + r * 8 + 4 * h, 4), vRES, r * 2048 + h * 1024))
        set_cur(g)
        a('s_and_b32 s%d, s%d, 3' % (sYS, sSEG))
        a('s_lshl_b32 s%d, s%d, 19' % (sYS, sYS))
        a('s_add_u32 s%d, s%d, 0x%x' % (sYS, sYS, YBOX))
        a('s_waitcnt lgkmcnt(0)')
    prep_step()
    lp = a.label('L_v_loop')
    a(lp + ':')
    retries = []
    lg = Cnt(a, 'lgkmcnt', 15)
    poll_mem(g)
    for i in range(30):
        key = order[i]
        if i % 3 == 0 and key[1] >= 3:
            slot_ready(g, key[1], retries)
        smf(g, lg, ops, key, vACC1 + 4 * int(key[0][1]), vA + 4 * key[1])
    for i in range(8):
        a('v_mov_b32 v%d, 0' % (vA + i))
    post_pair(g, lg, vACC1, vACC1 + 4, vTW1, 0, 'w1')
    post_single(g, lg, vACC1 + 8, vTW2, 0, 'w2')
    for i in range(8, 16):
        a('v_mov_b32 v%d, 0' % (vA + i))
    lg.wait_all()
    a('s_barrier')
    for ks in range(3):
        for h2 in range(2):
            a('ds_read_b64_tr_b16 %s, v%d offset:%d' % (V(vA2 + 4 * ks + 2 * h2, 2), vTRV, ks * 1024 + h2 * 64))
        lg.issue(('a2', ks), 2)
    for i in range(16, 40):
        a('v_mov_b32 v%d, 0' % (vA + i))

    def post4(t0, soff):
        acc = [vA + 4 * (t0 + i) for i in range(4)]
        for (X, Y) in ((acc[0], acc[2]), (acc[1], acc[3])):
            for r in range(4):
                a('v_permlane32_swap_b32 v%d, v%d' % (X + r, Y + r))
            for r in range(4):
                a('v_add_f32 v%d, v%d, v%d' % (X + r, X + r, Y + r))
        o = acc[2]
        a('v_cvt_pk_bf16_f32 v%d, v%d, v%d' % (o, acc[0], acc[0] + 1))
        a('v_cvt_pk_bf16_f32 v%d, v%d, v%d' % (o + 1, acc[0] + 2, acc[0] + 3))
        a('v_cvt_pk_bf16_f32 v%d, v%d, v%d' % (o + 2, acc[1], acc[1] + 1))
        a('v_cvt_pk_bf16_f32 v%d, v%d, v%d' % (o + 3, acc[1] + 2, acc[1] + 3))
        for i in range(4):
            a('v_min_u32 v%d, -2, v%d' % (o + i, o + i))
        a('v_permlane16_swap_b32 v%d, v%d' % (o, o + 2))
        a('v_permlane16_swap_b32 v%d, v%d' % (o + 1, o + 3))
        a('buffer_store_dwordx4 %s, v%d, %s, s%d offen sc1' % (V(o, 4), vY4, S4(R_WS), soff))

    seen = set()
    rest = order[30:]
    a('s_add_u32 s%d, s%d, %d' % (sY2, sYS, 4 * 8192))
    for i, key in enumerate(rest):
        if key[1] not in seen:
            lg.wait(('a2', key[1]))
            seen.add(key[1])
        smf(g, lg, ops, key, vA + 4 * int(key[0][1:]), vA2 + 4 * key[1])
        if i == 15:
            post4(0, sYS)
        if i == 27:
            post4(4, sY2)
    X, Y = vA + 32, vA + 36
    for r in range(4):
        a('v_permlane32_swap_b32 v%d, v%d' % (X + r, Y + r))
    for r in range(4):
        a('v_add_f32 v%d, v%d, v%d' % (X + r, X + r, Y + r))
    a('v_cvt_pk_bf16_f32 v%d, v%d, v%d' % (Y, X, X + 1))
    a('v_cvt_pk_bf16_f32 v%d, v%d, v%d' % (Y + 1, X + 2, X + 3))
    a('v_min_u32 v%d, -2, v%d' % (Y, Y))
    a('v_min_u32 v%d, -2, v%d' % (Y + 1, Y + 1))
    a('buffer_store_dwordx2 %s, v%d, %s, s%d offen sc1' % (V(Y, 2), vY2, S4(R_WS), sYS))
    a('s_add_u32 s%d, s%d, 3' % (sYS, sSEG))
    a('s_and_b32 s%d, s%d, 3' % (sYS, sYS))
    a('s_lshl_b32 s%d, s%d, 19' % (sYS, sYS))
    a('s_add_u32 s%d, s%d, 0x%x' % (sYS, sYS, YBOX))
    clear_slot(sYS)
    a('s_add_u32 s%d, s%d, 1' % (sSEG, sSEG))
    a('s_cmp_ge_u32 s%d, %d' % (sSEG, nseg))
    a('s_cbranch_scc1 L_end')
    prep_step()
    a('s_branch ' + lp)
    emit_retries(g, retries)


def role_o(g):
    a = g.a
    nseg = g.o.get('nseg', NSEG)
    vN, vG, vR, vC, vFIRST = 1, 2, 3, 4, 5
    vIX, vL16, vPO, vMO, vYO, vRW, vRR, vMST, vFLU, vFLD, vPXM, vXW, vXR, vBO, vGO, vOST = 6, 7, 8, 9, 10, 11, 12, 13, 14, 15, 21, 22, 23, 24, 25, 26
    vSN = 20
    vD, vP, vUC, vYC, vUO, vYOLD, vUN, vPXX, vXA, vRD, vBV, vGV = 28, 32, 52, 84, 92, 124, 132, 164, 244, 32, 48, 27
    sPS, sYS, sMS2, sU, sPXs, sBP, sG, sOUTs, sNEED, sT2 = 70, 71, 72, 73, 74, 75, 76, 77, 78, 79
    RED1, RED2 = 0, 4096
    a('L_O:')
    g.srd(R_W1, P_MEM0, 10240)
    g.lane_fields(vN, vG, vR, vC)
    a('v_and_b32 v%d, 8, v0' % vT0)
    a('v_cmp_eq_u32 vcc, 0, v%d' % vT0)
    a('v_mov_b32 v%d, 0xeeee' % vT0)
    a('v_mov_b32 v%d, 0x4444' % vT1)
    a('v_cndmask_b32 v%d, v%d, v%d, vcc' % (vIX, vT0, vT1))
    a('v_lshlrev_b32 v%d, 4, v0' % vL16)
    a('v_mov_b32 v%d, -1' % vSN)
    a('s_cmp_eq_u32 s%d, 0' % sW)
    a('s_cselect_b32 s%d, 0, 0x%x' % (sT, OOB))
    a('s_lshl_b32 s%d, s%d, 8' % (sT2, sIDX))
    a('s_or_b32 s%d, s%d, s%d' % (sT, sT, sT2))
    a('v_lshlrev_b32 v%d, 2, v0' % vMST)
    a('v_add_u32 v%d, s%d, v%d' % (vMST, sT, vMST))
    a('v_lshrrev_b32 v%d, 2, v0' % vT0)
    a('v_and_b32 v%d, 7, v%d' % (vT0, vT0))
    a('v_lshrrev_b32 v%d, 5, v0' % vT1)
    a('v_mul_u32_u24 v%d, 1280, v%d' % (vT2, vT0))
    a('v_lshl_add_u32 v%d, v%d, 4, v%d' % (vT2, vT1, vT2))
    a('v_lshl_add_u32 v%d, v%d, 2, v%d' % (vT2, vC, vT2))
    a('s_lshl_b32 s%d, s%d, 5' % (sT, sIDX))
    a('buffer_load_dword v%d, v%d, %s, s%d offen' % (vT3, vT2, S4(R_W1), sT))
    a('v_lshlrev_b32 v%d, 6, v%d' % (vRR, vT0))
    a('v_lshl_add_u32 v%d, v%d, 5, v%d' % (vRR, vT1, vRR))
    a('v_lshl_add_u32 v%d, v%d, 3, v%d' % (vRR, vC, vRR))
    a('v_and_b32 v%d, 1, v%d' % (vT0, vG))
    a('v_lshlrev_b32 v%d, 8, v%d' % (vRW, vT0))
    a('v_lshl_add_u32 v%d, v%d, 7, v%d' % (vRW, vT1, vRW))
    a('v_lshl_add_u32 v%d, v%d, 2, v%d' % (vRW, vN, vRW))
    a('s_lshl_b32 s%d, s%d, 9' % (sT, sW))
    a('v_add_u32 v%d, s%d, v%d' % (vRW, sT, vRW))
    for sl in range(1, 4):
        a('s_mov_b32 s%d, 0x%x' % (sT, MEMBOX + sl * MEMSTR))
        a('buffer_store_dword v%d, v%d, %s, s%d offen sc1' % (vSN, vMST, S4(R_WS), sT))
    a('s_waitcnt vmcnt(3)')
    a('v_min_u32 v%d, -2, v%d' % (vT3, vT3))
    a('s_mov_b32 s%d, 0x%x' % (sT, MEMBOX))
    a('buffer_store_dword v%d, v%d, %s, s%d offen sc1' % (vT3, vMST, S4(R_WS), sT))
    g.first_lane_off(vFIRST, 0)
    g.arrive(vFIRST, vT0)
    a('s_mul_i32 s%d, s%d, 5120' % (sT, sW))
    a('v_and_b32 v%d, 31, v0' % vT0)
    a('v_lshlrev_b32 v%d, 4, v%d' % (vT0, vT0))
    a('v_mul_u32_u24 v%d, 640, v%d' % (vPO, vT1))
    a('v_add3_u32 v%d, v%d, v%d, s%d' % (vPO, vPO, vT0, sT))
    a('v_mul_u32_u24 v%d, 1280, v%d' % (vMO, vG))
    a('v_lshl_add_u32 v%d, v%d, 3, v%d' % (vMO, vN, vMO))
    a('s_add_u32 s%d, s%d, 512' % (sT, sT))
    a('v_add_u32 v%d, s%d, v%d' % (vMO, sT, vMO))
    a('s_lshl_b32 s%d, s%d, 13' % (sT, sIDX))
    a('s_lshl_b32 s%d, s%d, 11' % (sT2, sW))
    a('s_add_u32 s%d, s%d, s%d' % (sT, sT, sT2))
    a('v_add_u32 v%d, s%d, v%d' % (vYO, sT, vL16))
    a('s_lshl_b32 s%d, s%d, 3' % (sT, sW))
    a('s_add_u32 s%d, s%d, %d' % (sT, sT, F_U))
    a('v_and_b32 v%d, 7, v0' % vT0)
    a('v_add_u32 v%d, s%d, v%d' % (vFLU, sT, vT0))
    a('v_lshlrev_b32 v%d, 7, v%d' % (vFLU, vFLU))
    a('s_mul_i32 s%d, s%d, 205' % (sT, sIDX))
    a('s_lshr_b32 s%d, s%d, 10' % (sT, sT))
    a('s_add_u32 s%d, s%d, %d' % (sT, sT, F_D))
    a('s_lshl_b32 s%d, s%d, 7' % (sT, sT))
    a('v_mov_b32 v%d, s%d' % (vFLD, sT))
    a('v_mul_u32_u24 v%d, 2560, v%d' % (vPXM, vG))
    a('v_lshl_add_u32 v%d, v%d, 4, v%d' % (vPXM, vN, vPXM))
    a('v_add_u32 v%d, 2048, v%d' % (vPXM, vPXM))
    a('s_lshl_b32 s%d, s%d, 11' % (sT, sW))
    a('s_add_u32 s%d, s%d, %d' % (sT, sT, RED2))
    a('v_add_u32 v%d, s%d, v%d' % (vXW, sT, vL16))
    a('s_and_b32 s%d, s%d, 1' % (sT2, sW))
    a('s_lshl_b32 s%d, s%d, 10' % (sT, sT2))
    a('v_add_u32 v%d, s%d, v%d' % (vBO, sT, vL16))
    a('v_add_u32 v%d, %d, v%d' % (vXR, RED2, vBO))
    a('s_lshl_b32 s%d, s%d, 6' % (sT, sT2))
    a('v_lshlrev_b32 v%d, 2, v%d' % (vGO, vN))
    a('v_add_u32 v%d, s%d, v%d' % (vGO, sT, vGO))
    a('s_mul_i32 s%d, s%d, %d' % (sT, sT2, 16 * 1280))
    a('s_lshl_b32 s%d, s%d, 5' % (sT2, sIDX))
    a('s_add_u32 s%d, s%d, s%d' % (sT, sT, sT2))
    a('s_cmp_lt_u32 s%d, 2' % sW)
    a('s_cselect_b32 s%d, 0, 0x%x' % (sT2, OOB))
    a('s_or_b32 s%d, s%d, s%d' % (sT, sT, sT2))
    a('v_mul_u32_u24 v%d, 1280, v%d' % (vOST, vN))
    a('v_lshl_add_u32 v%d, v%d, 3, v%d' % (vOST, vG, vOST))
    a('v_add_u32 v%d, s%d, v%d' % (vOST, sT, vOST))
    a('s_lshl_b32 s%d, s%d, 15' % (sU, sIDX))
    a('s_lshl_b32 s%d, s%d, 13' % (sT, sW))
    a('s_add_u32 s%d, s%d, s%d' % (sU, sU, sT))
    a('s_add_u32 s%d, s%d, 0x%x' % (sU, sU, UU))
    a('s_mul_i32 s%d, s%d, %d' % (sPXs, sW, 8 * 2560))
    a('s_add_u32 s%d, s%d, 0x%x' % (sPXs, sPXs, PX))
    a('s_lshl_b32 s%d, s%d, 11' % (sBP, sIDX))
    a('s_add_u32 s%d, s%d, 0x%x' % (sBP, sBP, BP))
    a('s_mov_b32 s%d, 0x%x' % (sG, GBUF))
    a('s_mov_b32 s%d, 0' % sOUTs)
    g.wait_start(vT0, vT1)

    def load_u(dst):
        for hh in range(8):
            if hh == 4:
                a('s_add_u32 s%d, s%d, 4096' % (sT2, sU))
            a('buffer_load_dwordx4 %s, v%d, %s, s%d offen offset:%d sc1' % (V(dst + 4 * hh, 4), vL16, S4(R_WS), sU if hh < 4 else sT2, (hh % 4) * 1024))
        a('s_add_u32 s%d, s%d, %d' % (sU, sU, 40 * 32768))
    a('s_mov_b32 s%d, 1' % sNEED)
    g.wait_flag(vT0, vFLU, sNEED)
    load_u(vUC)

    def slots():
        a('s_and_b32 s%d, s%d, 3' % (sT, sSEG))
        a('s_lshl_b32 s%d, s%d, 15' % (sPS, sT))
        a('s_add_u32 s%d, s%d, 0x%x' % (sPS, sPS, PBOX))
        a('s_lshl_b32 s%d, s%d, 19' % (sYS, sT))
        a('s_add_u32 s%d, s%d, 0x%x' % (sYS, sYS, YBOX))

    def poll(with_y):
        l, d = a.label('L_op'), a.label('L_opd')
        a(l + ':')
        if with_y:
            for R in range(2):
                a('buffer_load_dwordx4 %s, v%d, %s, s%d offen offset:%d sc1' % (V(vYC + 4 * R, 4), vYO, S4(R_WS), sYS, R * 1024))
        for pp in range(4):
            a('buffer_load_dwordx4 %s, v%d, %s, s%d offen offset:%d sc1' % (V(vP + 4 * pp, 4), vPO, S4(R_WS), sPS, pp * 1280))
        for e in range(2):
            a('buffer_load_dwordx2 %s, v%d, %s, s%d offen offset:%d sc1' % (V(vP + 16 + 2 * e, 2), vMO, S4(R_WS), sPS, e * 640))
        a('s_waitcnt vmcnt(0)')
        regs = list(range(vP, vP + 20)) + (list(range(vYC, vYC + 8)) if with_y else [])
        check_regs(g, regs, vT0)
        a('s_cbranch_vccz ' + d)
        g.spin_check()
        a('s_branch ' + l)
        a(d + ':')

    def out_x():
        g.wait_flag(vT0, vFLD, sSEG)
        for hh in range(8):
            a('s_add_u32 s%d, s%d, %d' % (sT2, sPXs, hh * 2560))
            for half in range(2):
                a('buffer_load_dwordx4 %s, v%d, %s, s%d offen offset:%d sc1' % (V(vPXX + (hh * 2 + half) * 4, 4), vL16, S4(R_WS), sT2, half * 1024))
        for R in range(2):
            a('s_add_u32 s%d, s%d, %d' % (sT2, sPXs, R * 4 * 2560))
            for half in range(2):
                a('buffer_load_dwordx4 %s, v%d, %s, s%d offen offset:%d sc1' % (V(vPXX + 64 + (R * 2 + half) * 4, 4), vPXM, S4(R_WS), sT2, half * 256))
        a('buffer_load_dwordx4 %s, v%d, %s, s%d offen sc1' % (V(vBV, 4), vBO, S4(R_WS), sBP))
        a('buffer_load_dword v%d, v%d, %s, s%d offen sc1' % (vGV, vGO, S4(R_WS), sG))
        for hh in range(8):
            a('s_waitcnt vmcnt(%d)' % (22 - 2 * (hh + 1)))
            for half in range(2):
                acc = V(vXA + 4 * half, 4)
                a('%s %s, %s, %s, %s' % (MF, acc, V(vUO + 4 * hh, 4), V(vPXX + (hh * 2 + half) * 4, 4), acc if hh else '0'))
        a('s_waitcnt vmcnt(2)')
        for R in range(2):
            for half in range(2):
                acc = V(vXA + 4 * half, 4)
                a('%s %s, %s, %s, %s' % (MF, acc, V(vYOLD + 4 * R, 4), V(vPXX + 64 + (R * 2 + half) * 4, 4), acc))
        for half in range(2):
            a('ds_write_b128 v%d, %s offset:%d' % (vXW, V(vXA + 4 * half, 4), half * 1024))
        a('s_waitcnt lgkmcnt(0)')
        a('s_barrier')
        for src in range(4):
            a('ds_read_b128 %s, v%d offset:%d' % (V(vRD + 4 * src, 4), vXR, src * 2048))
        a('s_waitcnt lgkmcnt(0)')
        for r in range(4):
            a('v_add_f32 v%d, v%d, v%d' % (vRD + r, vRD + r, vRD + 4 + r))
            a('v_add_f32 v%d, v%d, v%d' % (vRD + 8 + r, vRD + 8 + r, vRD + 12 + r))
        a('s_waitcnt vmcnt(0)')
        for r in range(4):
            a('v_add_f32 v%d, v%d, v%d' % (vRD + r, vRD + r, vRD + 8 + r))
        for r in range(4):
            a('v_fma_f32 v%d, v%d, v%d, v%d' % (vRD + r, vRD + r, vGV, vBV + r))
        a('v_cvt_pk_bf16_f32 v%d, v%d, v%d' % (vRD, vRD, vRD + 1))
        a('v_cvt_pk_bf16_f32 v%d, v%d, v%d' % (vRD + 1, vRD + 2, vRD + 3))
        a('buffer_store_dwordx2 %s, v%d, %s, s%d offen' % (V(vRD, 2), vOST, S4(R_OUT), sOUTs))
        a('s_add_u32 s%d, s%d, %d' % (sOUTs, sOUTs, 32 * 1280))
        a('s_add_u32 s%d, s%d, %d' % (sPXs, sPXs, 32 * 2560))
        a('s_add_u32 s%d, s%d, %d' % (sBP, sBP, 40 * 2048))
        a('s_add_u32 s%d, s%d, 128' % (sG, sG))

    lp = a.label('L_o_loop')
    a(lp + ':')
    slots()
    for i in range(4):
        a('v_mov_b32 v%d, 0' % (vD + i))
    poll(True)
    for pp in range(4):
        a('%s %s, %s, %s, v%d' % (SM, V(vD, 4), V(vP + 4 * pp, 4), V(vUC + 8 * pp, 8), vIX))
    a('%s %s, %s, %s, v%d' % (SM, V(vD, 4), V(vP + 16, 4), V(vYC, 8), vIX))
    a('s_add_u32 s%d, s%d, 1' % (sMS2, sSEG))
    a('s_and_b32 s%d, s%d, 3' % (sMS2, sMS2))
    a('s_lshl_b32 s%d, s%d, 14' % (sMS2, sMS2))
    a('s_add_u32 s%d, s%d, 0x%x' % (sMS2, sMS2, MEMBOX))
    a('v_permlane32_swap_b32 v%d, v%d' % (vD, vD + 2))
    a('v_permlane32_swap_b32 v%d, v%d' % (vD + 1, vD + 3))
    a('v_add_f32 v%d, v%d, v%d' % (vD, vD, vD + 2))
    a('v_add_f32 v%d, v%d, v%d' % (vD + 1, vD + 1, vD + 3))
    a('ds_write2_b32 v%d, v%d, v%d offset0:0 offset1:16' % (vRW, vD, vD + 1))
    a('s_waitcnt lgkmcnt(0)')
    a('s_barrier')
    for src in range(4):
        a('ds_read_b64 %s, v%d offset:%d' % (V(vP + 2 * src, 2), vRR, src * 512))
    a('s_waitcnt lgkmcnt(0)')
    for e in range(2):
        a('v_add_f32 v%d, v%d, v%d' % (vP + e, vP + e, vP + 2 + e))
        a('v_add_f32 v%d, v%d, v%d' % (vP + 4 + e, vP + 4 + e, vP + 6 + e))
    for e in range(2):
        a('v_add_f32 v%d, v%d, v%d' % (vP + e, vP + e, vP + 4 + e))
    a('v_cvt_pk_bf16_f32 v%d, v%d, v%d' % (vP, vP, vP + 1))
    a('v_min_u32 v%d, -2, v%d' % (vP, vP))
    a('buffer_store_dword v%d, v%d, %s, s%d offen sc1' % (vP, vMST, S4(R_WS), sMS2))
    a('s_and_b32 s%d, s%d, 3' % (sT, sSEG))
    a('s_lshl_b32 s%d, s%d, 14' % (sT, sT))
    a('s_add_u32 s%d, s%d, 0x%x' % (sT, sT, MEMBOX))
    a('buffer_store_dword v%d, v%d, %s, s%d offen sc1' % (vSN, vMST, S4(R_WS), sT))
    sk1, sk2, sk3 = a.label('L_o_s1'), a.label('L_o_s2'), a.label('L_o_s3')
    a('s_add_u32 s%d, s%d, 2' % (sNEED, sSEG))
    a('s_cmp_gt_u32 s%d, %d' % (sNEED, nseg))
    a('s_cbranch_scc1 ' + sk1)
    g.wait_flag(vT0, vFLU, sNEED)
    load_u(vUN)
    a(sk1 + ':')
    a('s_cmp_eq_u32 s%d, 0' % sSEG)
    a('s_cbranch_scc1 ' + sk2)
    out_x()
    a('s_branch ' + sk3)
    a(sk2 + ':')
    a('s_barrier')
    a(sk3 + ':')
    a('s_waitcnt vmcnt(0)')
    for i in range(40):
        a('v_mov_b32 v%d, v%d' % (vUO + i, vUC + i))
    for i in range(32):
        a('v_mov_b32 v%d, v%d' % (vUC + i, vUN + i))
    a('s_add_u32 s%d, s%d, 1' % (sSEG, sSEG))
    a('s_cmp_lt_u32 s%d, %d' % (sSEG, nseg))
    a('s_cbranch_scc1 ' + lp)
    slots()
    poll(False)
    out_x()
    a('s_endpgm')
```

```python
import struct
from gen import *


def f2h(f):
    return '0x%08x' % struct.unpack('<I', struct.pack('<f', f))[0]


class Cnt:
    def __init__(self, a, name, maxv):
        self.a, self.name, self.maxv = a, name, maxv
        self.n = 0
        self.tags = {}

    def issue(self, tag=None, k=1):
        self.n += k
        if tag is not None:
            self.tags[tag] = self.n

    def wait(self, tag):
        after = self.n - self.tags[tag]
        self.a('s_waitcnt %s(%d)' % (self.name, min(after, self.maxv)))

    def wait_all(self):
        self.a('s_waitcnt %s(0)' % self.name)


def role_bu(g):
    a = g.a
    sFLAG, sOUT, sLDSW, sSO, sVX, sNEED, sO2 = 70, 71, 72, 73, 74, 75, 76
    vN, vG, vR, vC, vFIRST, vT0, vT1, vT2 = 1, 2, 3, 4, 5, 6, 7, 8
    vWOFF, vTR, vLO, vFL = 10, 15, 16, 20
    SETS = (32, 80)
    ACC = (128, 136)
    PK = (144, 148)
    a('L_BU:')
    g.srd(R_W1, P_WO, 32 * 245760)
    a('s_add_u32 s%d, s%d, %d' % (sFLAG, sIDX, F_U))
    a('s_lshl_b32 s%d, s%d, 7' % (sFLAG, sFLAG))
    g.lane_fields(vN, vG, vR, vC)
    g.first_lane_off(vFIRST, 0)
    g.init_flag_and_arrive(vFIRST, vT0, sFLAG)
    a('s_mul_i32 s%d, s%d, 40960' % (sLDSW, sW))
    for ph in range(5):
        a('v_add_u32 v%d, %d, v0' % (vT0, 64 * ph))
        g.divmod_v(vT1, vT2, vT0, 20, 640)
        a('v_mul_u32_u24 v%d, 1280, v%d' % (vT1, vT1))
        a('v_lshl_add_u32 v%d, v%d, 4, v%d' % (vWOFF + ph, vT2, vT1))
    a('s_mul_i32 s%d, s%d, 245760' % (sSO, sIDX))
    a('s_mul_i32 s%d, s%d, 320' % (sT, sW))
    a('s_add_u32 s%d, s%d, s%d' % (sSO, sSO, sT))
    a('v_lshl_add_u32 v%d, v%d, 2, v%d' % (vT0, vG, vR))
    a('v_mul_u32_u24 v%d, 320, v%d' % (vT0, vT0))
    a('v_lshl_add_u32 v%d, v%d, 3, v%d' % (vTR, vC, vT0))
    a('v_add_u32 v%d, s%d, v%d' % (vTR, sLDSW, vTR))

    def mk(dt):
        wp, T = dt // 3, dt % 3
        ks, h2 = (wp, T) if T < 2 else (4 + wp // 2, wp % 2)

        def issue(buf):
            for ph in range(5):
                g.dma(vWOFF + ph, R_W1, sSO, sLDSW, buf * 5120 + ph * 1024)
            a('s_add_u32 s%d, s%d, %d' % (sSO, sSO, 16 * 1280))

        def reads(buf):
            for Tn in range(10):
                a('ds_read_b64_tr_b16 %s, v%d offset:%d' % (A((Tn * 6 + ks) * 4 + 2 * h2, 2), vTR, buf * 5120 + Tn * 32))
        return (issue, 5, reads)
    g.weight_pipeline([mk(dt) for dt in range(12)], 8)
    for wp in range(4):
        a('v_lshlrev_b32 v%d, 4, v0' % (vLO + wp))
        if wp:
            a('v_add_u32 v%d, %d, v%d' % (vLO + wp, 3072 * wp, vLO + wp))
    a('s_add_u32 s%d, s%d, %d' % (sT, sIDX, F_V))
    a('s_lshl_b32 s%d, s%d, 7' % (sT, sT))
    a('v_mov_b32 v%d, s%d' % (vFL, sT))
    a('s_mul_i32 s%d, s%d, 12288' % (sVX, sIDX))
    a('s_add_u32 s%d, s%d, 0x%x' % (sVX, sVX, VX))
    a('s_lshl_b32 s%d, s%d, 10' % (sOUT, sIDX))
    a('s_mul_i32 s%d, s%d, %d' % (sT, sW, 10 * 32768))
    a('s_add_u32 s%d, s%d, s%d' % (sOUT, sOUT, sT))
    a('s_add_u32 s%d, s%d, 0x%x' % (sOUT, sOUT, UU))
    g.wait_start(vT0, vT1)

    def loads(base):
        for wp in range(4):
            for half in range(2):
                a('buffer_load_dwordx4 %s, v%d, %s, s%d offen offset:%d sc1' % (V(base + (wp * 2 + half) * 4, 4), vLO + wp, S4(R_WS), sVX, half * 1024))
        for wp in range(4):
            for half in range(2):
                a('buffer_load_dwordx2 %s, v%d, %s, s%d offen offset:%d sc1' % (V(base + ((4 + wp // 2) * 2 + half) * 4 + (wp % 2) * 2, 2), vLO + wp, S4(R_WS), sVX, 2048 + half * 8))
        a('s_add_u32 s%d, s%d, %d' % (sVX, sVX, 32 * 12288))
    a('s_mov_b32 s%d, 1' % sNEED)
    g.wait_flag(vT0, vFL, sNEED)
    loads(SETS[0])
    a('s_waitcnt vmcnt(0)')
    lp = a.label('L_bu_loop')
    a(lp + ':')
    for par in range(2):
        cur, nxt = SETS[par], SETS[1 - par]
        skip = a.label('L_bu_skip')
        a('s_add_u32 s%d, s%d, 2' % (sNEED, sSEG))
        a('s_cmp_gt_u32 s%d, %d' % (sNEED, g.o.get('nseg', NSEG)))
        a('s_cbranch_scc1 ' + skip)
        g.wait_flag(vT0, vFL, sNEED)
        loads(nxt)
        a(skip + ':')

        def epi(Tn):
            acc, pk = ACC[Tn % 2], PK[Tn % 2]
            for p in range(4):
                a('v_cvt_pk_bf16_f32 v%d, v%d, v%d' % (pk + p, acc + 2 * p, acc + 2 * p + 1))
            a('s_add_u32 s%d, s%d, %d' % (sO2, sOUT, Tn * 32768))
            a('buffer_store_dwordx4 %s, v%d, %s, s%d offen sc1' % (V(pk, 4), vLO, S4(R_WS), sO2))
        for Tn in range(10):
            for ks in range(6):
                for half in range(2):
                    acc = V(ACC[Tn % 2] + half * 4, 4)
                    a('v_mfma_f32_16x16x32_bf16 %s, %s, %s, %s' % (acc, V(cur + (ks * 2 + half) * 4, 4), A((Tn * 6 + ks) * 4, 4), acc if ks else '0'))
                if ks == 3 and Tn:
                    epi(Tn - 1)
        epi(9)
        a('s_add_u32 s%d, s%d, %d' % (sOUT, sOUT, 40 * 32768))
        g.publish_flag(vFIRST, vT0, sFLAG)
        a('s_add_u32 s%d, s%d, 1' % (sSEG, sSEG))
    a('s_cmp_lt_u32 s%d, %d' % (sSEG, g.o.get('nseg', NSEG)))
    a('s_cbranch_scc1 ' + lp)
    a('s_endpgm')


def role_d(g):
    a = g.a
    sFLAG, sOUT, sLDSW, sSO, sH, sNEED, sG, sH2 = 70, 71, 72, 73, 74, 75, 76, 77
    vN, vG, vR, vC, vFIRST, vT0, vT1, vT2 = 1, 2, 3, 4, 5, 6, 7, 8
    vWOFF, vTR1, vTR2, vLO, vFL, vRW, vRED, vS1, vS2, vGO, vGV = 10, 15, 16, 17, 18, 19, 20, 21, 22, 23, 24
    vH, vACC, vX = 32, 128, 168
    a('L_D:')
    g.srd(R_W1, P_WD, 1536 * 1280)
    a('s_add_u32 s%d, s%d, %d' % (sFLAG, sIDX, F_D))
    a('s_lshl_b32 s%d, s%d, 7' % (sFLAG, sFLAG))
    g.lane_fields(vN, vG, vR, vC)
    g.first_lane_off(vFIRST, 0)
    g.init_flag_and_arrive(vFIRST, vT0, sFLAG)
    a('s_mul_i32 s%d, s%d, 40960' % (sLDSW, sW))
    for ph in range(5):
        a('v_add_u32 v%d, %d, v0' % (vT0, 64 * ph))
        g.divmod_v(vT1, vT2, vT0, 10, 320)
        a('v_mul_u32_u24 v%d, 1280, v%d' % (vT1, vT1))
        a('v_lshl_add_u32 v%d, v%d, 4, v%d' % (vWOFF + ph, vT2, vT1))
    a('s_mul_i32 s%d, s%d, 160' % (sSO, sIDX))
    a('s_mul_i32 s%d, s%d, %d' % (sT, sW, 384 * 1280))
    a('s_add_u32 s%d, s%d, s%d' % (sSO, sSO, sT))
    a('v_lshrrev_b32 v%d, 1, v%d' % (vT0, vG))
    a('v_mul_u32_u24 v%d, 24, v%d' % (vT0, vT0))
    a('v_and_b32 v%d, 1, v%d' % (vT1, vG))
    a('v_lshl_add_u32 v%d, v%d, 2, v%d' % (vT0, vT1, vT0))
    a('v_add_u32 v%d, v%d, v%d' % (vT0, vT0, vR))
    a('v_mul_u32_u24 v%d, 160, v%d' % (vT0, vT0))
    a('v_lshl_add_u32 v%d, v%d, 3, v%d' % (vTR1, vC, vT0))
    a('v_add_u32 v%d, s%d, v%d' % (vTR1, sLDSW, vTR1))
    a('v_mul_u32_u24 v%d, 24, v%d' % (vT0, vG))
    a('v_add_u32 v%d, v%d, v%d' % (vT0, vT0, vR))
    a('v_mul_u32_u24 v%d, 160, v%d' % (vT0, vT0))
    a('v_lshl_add_u32 v%d, v%d, 3, v%d' % (vTR2, vC, vT0))
    a('v_add_u32 v%d, s%d, v%d' % (vTR2, sLDSW, vTR2))

    def mk(jj):
        def issue(buf):
            for part in range(3):
                for ph in range(5):
                    g.dma(vWOFF + ph, R_W1, sSO, sLDSW, buf * 15360 + part * 5120 + ph * 1024)
                a('s_add_u32 s%d, s%d, %d' % (sSO, sSO, 32 * 1280))

        def reads(buf):
            for kk in range(3):
                for T in range(5):
                    for h2 in range(2):
                        dst = A(((jj * 3 + kk) * 5 + T) * 4 + 2 * h2, 2)
                        if kk < 2:
                            a('ds_read_b64_tr_b16 %s, v%d offset:%d' % (dst, vTR1, buf * 15360 + (48 * kk + 8 * h2) * 160 + T * 32))
                        else:
                            a('ds_read_b64_tr_b16 %s, v%d offset:%d' % (dst, vTR2, buf * 15360 + (16 + 4 * h2) * 160 + T * 32))
        return (issue, 15, reads)
    g.weight_pipeline([mk(jj) for jj in range(4)], 2)
    a('v_lshlrev_b32 v%d, 4, v0' % vLO)
    a('s_lshl_b32 s%d, s%d, 2' % (sT, sW))
    a('s_add_u32 s%d, s%d, %d' % (sT, sT, F_GU))
    a('v_add_u32 v%d, s%d, v%d' % (vFL, sT, vC))
    a('v_lshlrev_b32 v%d, 7, v%d' % (vFL, vFL))
    a('s_mul_i32 s%d, s%d, 10240' % (sT, sW))
    a('v_add_u32 v%d, s%d, v%d' % (vRW, sT, vLO))
    a('s_lshl_b32 s%d, s%d, 10' % (sT, sW))
    a('v_add_u32 v%d, s%d, v%d' % (vRED, sT, vLO))
    a('v_add_u32 v%d, 4096, v%d' % (vS1, vRED))
    a('v_add_u32 v%d, 8192, v%d' % (vS2, vRED))
    a('s_cmp_lt_u32 s%d, 2' % sW)
    a('s_cselect_b32 s%d, 0, 0x%x' % (sT, OOB))
    a('v_or_b32 v%d, s%d, v%d' % (vS2, sT, vS2))
    a('s_and_b32 s%d, s%d, 1' % (sT, sW))
    a('s_lshl_b32 s%d, s%d, 6' % (sT, sT))
    a('v_lshlrev_b32 v%d, 2, v%d' % (vGO, vN))
    a('v_add_u32 v%d, s%d, v%d' % (vGO, sT, vGO))
    a('s_mov_b32 s%d, 0x%x' % (sG, GBUF))
    a('s_mul_i32 s%d, s%d, %d' % (sH, sW, 12 * 1024))
    a('s_add_u32 s%d, s%d, 0x%x' % (sH, sH, HH))
    a('s_mul_i32 s%d, s%d, %d' % (sOUT, sIDX, 5 * 2048))
    a('s_add_u32 s%d, s%d, 0x%x' % (sOUT, sOUT, BP))
    g.wait_start(vT0, vT1)

    def ld(ks):
        for half in range(2):
            a('s_add_u32 s%d, s%d, %d' % (sH2, sH, half * 49152 + (ks // 4) * 4096))
            a('buffer_load_dwordx4 %s, v%d, %s, s%d offen offset:%d sc1' % (V(vH + (ks * 2 + half) * 4, 4), vLO, S4(R_WS), sH2, (ks % 4) * 1024))
    a('s_mov_b32 s%d, 1' % sNEED)
    g.wait_flag(vT0, vFL, sNEED)
    for ks in range(12):
        ld(ks)
    a('s_waitcnt vmcnt(0)')
    a('s_barrier')
    lp = a.label('L_d_loop')
    skip = a.label('L_d_skip')
    a(lp + ':')
    a('s_add_u32 s%d, s%d, 2' % (sNEED, sSEG))
    a('s_cmp_gt_u32 s%d, %d' % (sNEED, g.o.get('nseg', NSEG)))
    a('s_cbranch_scc1 ' + skip)
    g.wait_flag(vT0, vFL, sNEED)
    a(skip + ':')
    a('buffer_load_dword v%d, v%d, %s, s%d offen sc1' % (vGV, vGO, S4(R_WS), sG))
    a('s_add_u32 s%d, s%d, %d' % (sH, sH, 98304))
    for ks in range(12):
        for T in range(5):
            for half in range(2):
                acc = V(vACC + (T * 2 + half) * 4, 4)
                a('v_mfma_f32_16x16x32_bf16 %s, %s, %s, %s' % (acc, A((ks * 5 + T) * 4, 4), V(vH + (ks * 2 + half) * 4, 4), acc if ks else '0'))
        ld(ks)
    for it in range(10):
        a('ds_write_b128 v%d, %s offset:%d' % (vRW, V(vACC + it * 4, 4), it * 1024))
    a('s_waitcnt lgkmcnt(0)')
    a('s_barrier')
    for it in range(3):
        for src in range(4):
            a('ds_read_b128 %s, v%d offset:%d' % (V(vX + (it * 4 + src) * 4, 4), vRED, it * 4096 + src * 10240))
    a('s_waitcnt vmcnt(24)')
    a('v_sub_f32 v%d, 1.0, v%d' % (vGV, vGV))
    for it in range(3):
        a('s_waitcnt lgkmcnt(%d)' % (8 - 4 * it))
        b = vX + it * 16
        for r in range(4):
            a('v_add_f32 v%d, v%d, v%d' % (b + r, b + r, b + 4 + r))
            a('v_add_f32 v%d, v%d, v%d' % (b + 8 + r, b + 8 + r, b + 12 + r))
        for r in range(4):
            a('v_add_f32 v%d, v%d, v%d' % (b + r, b + r, b + 8 + r))
        for r in range(4):
            a('v_mul_f32 v%d, v%d, v%d' % (b + r, b + r, vGV))
        a('buffer_store_dwordx4 %s, v%d, %s, s%d offen sc1' % (V(b, 4), (vRED, vS1, vS2)[it], S4(R_WS), sOUT))
    a('s_add_u32 s%d, s%d, %d' % (sOUT, sOUT, 40 * 2048))
    a('s_add_u32 s%d, s%d, 128' % (sG, sG))
    g.publish_flag(vFIRST, vT0, sFLAG)
    a('s_add_u32 s%d, s%d, 1' % (sSEG, sSEG))
    a('s_cmp_lt_u32 s%d, %d' % (sSEG, g.o.get('nseg', NSEG)))
    a('s_cbranch_scc1 ' + lp)
    a('s_endpgm')


def add_roles(g, on):
    import rec
    if on('A'):
        g.bulk_a('qkv')
    else:
        for l in ('L_BQ', 'L_BK', 'L_BV'):
            g.stub_role(l)
    if on('GU'):
        g.bulk_a('gu')
    else:
        g.stub_role('L_GU')
    (role_bu(g) if on('U') else g.stub_role('L_BU'))
    (role_d(g) if on('D') else g.stub_role('L_D'))
    (rec.role_p(g) if on('P') else g.stub_role('L_P'))
    (rec.role_v(g) if on('V') else g.stub_role('L_V'))
    (rec.role_o(g) if on('O') else g.stub_role('L_O'))
```

```python
import sys, os
sys.path.insert(0, os.path.dirname(os.path.abspath(__file__)))
from emit import Asm, magic

NAME = 'gated_mix__memory_aug_recurrent_mem_tr__glu_gated_geglu__prompt'
NSEG = 64
FLAGS = 0x0
F_Q, F_K, F_V, F_U, F_GU, F_D = 0, 32, 64, 96, 128, 144
GBUF = 0x10000
MEMBOX, MEMSTR = 0x20000, 0x4000
PBOX, PSTR = 0x40000, 0x8000
YBOX, YSTR = 0x100000, 0x80000
PX = 0x400000
BP = 0xA00000
HH = 0x1000000
QX, KX, VX = 0x2000000, 0x3800000, 0x5000000
UU = 0x6800000
WS_BYTES = 268435456
OOB = 0x80000000
SPIN_LIMIT = 200000
LDS_BYTES = 163840

sW, sIDX, sSEG, sSPIN, sT = 3, 4, 5, 6, 7
P_X, P_MEM0, P_WQ, P_WK, P_WV, P_WO, P_WG, P_WU, P_WD, P_GW, P_OUT, P_DBG, P_WS = 8, 10, 12, 14, 16, 18, 24, 26, 28, 30, 32, 34, 36
R_WS, R_X, R_W1, R_W2, R_OUT, R_DBG = 40, 44, 48, 52, 56, 60


def S4(r):
    return 's[%d:%d]' % (r, r + 3)


def V(r, n=1):
    return 'v%d' % r if n == 1 else 'v[%d:%d]' % (r, r + n - 1)


def A(r, n=1):
    return 'a%d' % r if n == 1 else 'a[%d:%d]' % (r, r + n - 1)


class Gen:
    def __init__(self, opts):
        self.a = Asm()
        self.o = opts

    def srd(self, dst, ptr, nbytes):
        a = self.a
        a('s_mov_b32 s%d, s%d' % (dst, ptr))
        a('s_mov_b32 s%d, s%d' % (dst + 1, ptr + 1))
        a('s_mov_b32 s%d, 0x%x' % (dst + 2, nbytes))
        a('s_mov_b32 s%d, 0x20000' % (dst + 3))

    def divmod_v(self, q, r, x, d, nmax):
        m, s = magic(d, nmax)
        a = self.a
        a('v_mul_u32_u24 v%d, %d, v%d' % (q, m, x))
        a('v_lshrrev_b32 v%d, %d, v%d' % (q, s, q))
        a('v_mul_u32_u24 v%d, %d, v%d' % (r, d, q))
        a('v_sub_u32 v%d, v%d, v%d' % (r, x, r))

    def spin_check(self):
        a = self.a
        a('s_add_u32 s%d, s%d, 1' % (sSPIN, sSPIN))
        a('s_cmp_gt_u32 s%d, %d' % (sSPIN, SPIN_LIMIT))
        a('s_cbranch_scc1 L_timeout')

    def first_lane_off(self, vdst, vlane, base_expr_sgpr=None):
        a = self.a
        a('v_mov_b32 v%d, s%d' % (vdst, sW))
        a('v_or_b32 v%d, v%d, v%d' % (vdst, vdst, vlane))
        a('v_cmp_eq_u32 vcc, 0, v%d' % vdst)
        a('v_mov_b32 v%d, 0x%x' % (vdst, OOB))
        a('v_cndmask_b32_e64 v%d, v%d, 0, vcc' % (vdst, vdst))

    def arrive(self, vfirst, vtmp):
        a = self.a
        a('s_waitcnt vmcnt(0)')
        a('s_barrier')
        a('v_mov_b32 v%d, 1' % vtmp)
        a('buffer_atomic_add v%d, v%d, %s, 0 offen sc1' % (vtmp, vfirst, S4(R_DBG)))

    def wait_start(self, vtmp, vzero):
        a = self.a
        l = a.label('L_ws')
        d = a.label('L_wsd')
        a('v_mov_b32 v%d, 0' % vzero)
        a(l + ':')
        a('buffer_load_dword v%d, v%d, %s, 0 offen sc1' % (vtmp, vzero, S4(R_DBG)))
        a('s_waitcnt vmcnt(0)')
        a('v_cmp_gt_u32 vcc, 256, v%d' % vtmp)
        a('s_cbranch_vccz ' + d)
        a('s_sleep 8')
        self.spin_check()
        a('s_branch ' + l)
        a(d + ':')

    def wait_flag(self, vtmp, voff, sneed, sleep=2):
        a = self.a
        l = a.label('L_wf')
        d = a.label('L_wfd')
        a(l + ':')
        a('buffer_load_dword v%d, v%d, %s, 0 offen sc1' % (vtmp, voff, S4(R_WS)))
        a('s_waitcnt vmcnt(0)')
        a('v_cmp_gt_u32 vcc, s%d, v%d' % (sneed, vtmp))
        a('s_cbranch_vccz ' + d)
        a('s_sleep %d' % sleep)
        self.spin_check()
        a('s_branch ' + l)
        a(d + ':')

    def dma(self, voff, srd, ssoff, sldsbase, ldsoff):
        a = self.a
        a('s_add_u32 m0, s%d, %d' % (sldsbase, ldsoff))
        a('buffer_load_dwordx4 v%d, %s, s%d offen lds' % (voff, S4(srd), ssoff))

    def weight_pipeline(self, chunks, nbuf, pre_outstanding=0):
        a = self.a
        n = len(chunks)
        for i in range(min(nbuf, n)):
            chunks[i][0](i % nbuf)
        for i in range(n):
            later = sum(chunks[k][1] for k in range(i + 1, min(i + nbuf, n)))
            assert later <= 63
            a('s_waitcnt vmcnt(%d)' % later)
            chunks[i][2](i % nbuf)
            if i + nbuf < n:
                a('s_waitcnt lgkmcnt(0)')
                chunks[i + nbuf][0](i % nbuf)
        a('s_waitcnt lgkmcnt(0)')

    def prologue(self):
        a = self.a
        a('s_cmp_ge_u32 s2, 256')
        a('s_cbranch_scc1 L_end')
        a('s_load_dwordx16 s[8:23], s[0:1], 0')
        a('s_load_dwordx8 s[24:31], s[0:1], 64')
        a('s_load_dwordx4 s[32:35], s[0:1], 96')
        a('s_load_dwordx2 s[36:37], s[0:1], 112')
        a('v_lshrrev_b32 v1, 6, v0')
        a('v_and_b32 v0, 63, v0')
        a('v_readfirstlane_b32 s%d, v1' % sW)
        a('s_mov_b32 s%d, 0' % sSPIN)
        a('s_mov_b32 s%d, 0' % sSEG)
        a('s_and_b32 s64, s2, 7')
        a('s_lshr_b32 s65, s2, 3')
        a('s_waitcnt lgkmcnt(0)')
        self.srd(R_WS, P_WS, WS_BYTES)
        self.srd(R_X, P_X, 2048 * 1280)
        self.srd(R_DBG, P_DBG, 256)
        self.srd(R_OUT, P_OUT, 2048 * 1280)
        a('s_and_b32 s66, s65, 3')
        a('s_lshl_b32 s%d, s64, 2' % sIDX)
        a('s_add_u32 s%d, s%d, s66' % (sIDX, sIDX))
        for lim, lab in ((4, 'L_P'), (8, 'L_V'), (12, 'L_BQ'), (16, 'L_BK'), (20, 'L_BV'), (24, 'L_BU')):
            a('s_cmp_lt_u32 s65, %d' % lim)
            a('s_cbranch_scc1 %s' % lab)
        a('s_mul_i32 s%d, s64, 5' % sIDX)
        a('s_add_u32 s%d, s%d, s65' % (sIDX, sIDX))
        a('s_sub_u32 s%d, s%d, 24' % (sIDX, sIDX))
        a('s_cmp_lt_u32 s65, 29')
        a('s_cbranch_scc1 L_O')
        a('s_lshl_b32 s%d, s64, 1' % sIDX)
        a('s_add_u32 s%d, s%d, s65' % (sIDX, sIDX))
        a('s_sub_u32 s%d, s%d, 29' % (sIDX, sIDX))
        a('s_cmp_lt_u32 s65, 31')
        a('s_cbranch_scc1 L_GU')
        a('s_mov_b32 s%d, s64' % sIDX)
        a('s_branch L_D')

    def stub_role(self, label):
        a = self.a
        a(label + ':')
        self.first_lane_off(2, 0)
        self.arrive(2, 3)
        a('s_endpgm')

    def lane_fields(self, vn, vg, vr, vc):
        a = self.a
        a('v_and_b32 v%d, 15, v0' % vn)
        a('v_lshrrev_b32 v%d, 4, v0' % vg)
        a('v_lshrrev_b32 v%d, 2, v%d' % (vr, vn))
        a('v_and_b32 v%d, 3, v0' % vc)

    def init_flag_and_arrive(self, vfirst, vtmp, sflagoff):
        a = self.a
        a('v_mov_b32 v%d, 0' % vtmp)
        a('buffer_store_dword v%d, v%d, %s, s%d offen sc1' % (vtmp, vfirst, S4(R_WS), sflagoff))
        self.arrive(vfirst, vtmp)

    def publish_flag(self, vfirst, vtmp, sflagoff):
        a = self.a
        a('s_waitcnt vmcnt(0)')
        a('s_barrier')
        a('s_add_u32 s%d, s%d, 1' % (sT, sSEG))
        a('v_mov_b32 v%d, s%d' % (vtmp, sT))
        a('buffer_store_dword v%d, v%d, %s, s%d offen sc1' % (vtmp, vfirst, S4(R_WS), sflagoff))

    def bulk_a(self, kind):
        a = self.a
        gu = kind == 'gu'
        sFLAG, sOUT, sLDSW, sSO, sXS, sDELTA, sXM = 70, 71, 72, 73, 74, 75, 76
        vN, vG, vR, vC, vFIRST, vT0, vT1, vT2 = 1, 2, 3, 4, 5, 6, 7, 8
        vWOFF = 10
        vTR = 13
        vXO = 14
        vXA = 24
        vST = 28
        vACC = 32
        vGA = 56
        vB = 64
        vO = 96
        vGW = 128
        if not gu:
            for lab, ptr, outb, fl in (('L_BQ', P_WQ, QX, F_Q), ('L_BK', P_WK, KX, F_K), ('L_BV', P_WV, VX, F_V)):
                a(lab + ':')
                self.srd(R_W1, ptr, 640 * 12288)
                a('s_mov_b32 s%d, 0x%x' % (sOUT, outb))
                a('s_add_u32 s%d, s%d, %d' % (sFLAG, sIDX, fl))
                a('s_branch L_BA')
            a('L_BA:')
        else:
            a('L_GU:')
            self.srd(R_W1, P_WG, 640 * 3072)
            self.srd(R_W2, P_WU, 640 * 3072)
            a('s_mov_b32 s%d, 0x%x' % (sOUT, HH))
            a('s_add_u32 s%d, s%d, %d' % (sFLAG, sIDX, F_GU))
        a('s_lshl_b32 s%d, s%d, 7' % (sFLAG, sFLAG))
        self.lane_fields(vN, vG, vR, vC)
        self.first_lane_off(vFIRST, 0)
        self.init_flag_and_arrive(vFIRST, vT0, sFLAG)
        for i in range(10):
            a('s_mul_i32 s%d, s%d, 640' % (sT, sW))
            a('s_add_u32 s%d, s%d, %d' % (sT, sT, 64 * i))
            a('v_add_u32 v%d, s%d, v0' % (vT0, sT))
            self.divmod_v(vT1, vT2, vT0, 80, 2560)
            a('v_and_b32 v%d, 7, v%d' % (vT0, vT1))
            a('v_lshlrev_b32 v%d, 1, v%d' % (vT0, vT0))
            a('v_xor_b32 v%d, v%d, v%d' % (vT2, vT2, vT0))
            a('v_mul_u32_u24 v%d, 1280, v%d' % (vT1, vT1))
            a('v_lshl_add_u32 v%d, v%d, 4, v%d' % (vXO + i, vT2, vT1))
        a('s_mul_i32 s%d, s%d, 10240' % (sXM, sW))
        a('s_mov_b32 s%d, 0' % sXS)
        for i in range(10):
            self.dma(vXO + i, R_X, sXS, sXM, 1024 * i)
        for m in range(4):
            a('v_and_b32 v%d, 7, v%d' % (vT0, vN))
            a('v_lshlrev_b32 v%d, 1, v%d' % (vT0, vT0))
            a('v_add_u32 v%d, %d, v%d' % (vT1, 4 * m, vG))
            a('v_xor_b32 v%d, v%d, v%d' % (vT1, vT1, vT0))
            a('v_mul_u32_u24 v%d, 1280, v%d' % (vT0, vN))
            a('v_lshl_add_u32 v%d, v%d, 4, v%d' % (vXA + m, vT1, vT0))
        a('s_mul_i32 s%d, s%d, 30720' % (sLDSW, sW))
        a('s_add_u32 s%d, s%d, 40960' % (sLDSW, sLDSW))
        if not gu:
            for ph in range(3):
                a('v_add_u32 v%d, %d, v0' % (vT0, 64 * ph))
                self.divmod_v(vT1, vT2, vT0, 6, 192)
                a('v_mul_u32_u24 v%d, 12288, v%d' % (vT1, vT1))
                a('v_lshl_add_u32 v%d, v%d, 4, v%d' % (vWOFF + ph, vT2, vT1))
            a('s_mul_i32 s%d, s%d, 384' % (sSO, sIDX))
            a('s_mul_i32 s%d, s%d, 96' % (sT, sW))
            a('s_add_u32 s%d, s%d, s%d' % (sSO, sSO, sT))
            a('v_lshl_add_u32 v%d, v%d, 3, v%d' % (vT0, vG, vR))
            a('v_mul_u32_u24 v%d, 96, v%d' % (vT0, vT0))
            a('v_lshl_add_u32 v%d, v%d, 3, v%d' % (vTR, vC, vT0))
            a('v_add_u32 v%d, s%d, v%d' % (vTR, sLDSW, vTR))

            def mk(ks):
                def issue(buf):
                    for ph in range(3):
                        self.dma(vWOFF + ph, R_W1, sSO, sLDSW, buf * 3072 + ph * 1024)
                    a('s_add_u32 s%d, s%d, %d' % (sSO, sSO, 32 * 12288))

                def reads(buf):
                    for T in range(3):
                        for h2 in range(2):
                            a('ds_read_b64_tr_b16 %s, v%d offset:%d' % (A((ks * 3 + T) * 4 + 2 * h2, 2), vTR, buf * 3072 + h2 * 384 + T * 32))
                return (issue, 3, reads)
            self.weight_pipeline([mk(ks) for ks in range(20)], 10)
        else:
            for ph in range(3):
                a('v_add_u32 v%d, %d, v0' % (vT0, 64 * ph))
                self.divmod_v(vT1, vT2, vT0, 3, 192)
                a('v_mul_u32_u24 v%d, 3072, v%d' % (vT1, vT1))
                a('v_lshl_add_u32 v%d, v%d, 4, v%d' % (vWOFF + ph, vT2, vT1))
            a('s_mul_i32 s%d, s%d, 192' % (sSO, sIDX))
            a('s_mul_i32 s%d, s%d, 48' % (sT, sW))
            a('s_add_u32 s%d, s%d, s%d' % (sSO, sSO, sT))
            a('v_lshl_add_u32 v%d, v%d, 3, v%d' % (vT0, vG, vR))
            a('v_mul_u32_u24 v%d, 48, v%d' % (vT0, vT0))
            a('v_and_b32 v%d, 1, v%d' % (vT1, vC))
            a('v_lshl_add_u32 v%d, v%d, 3, v%d' % (vT0, vT1, vT0))
            a('v_lshrrev_b32 v%d, 1, v%d' % (vT1, vC))
            a('v_mul_u32_u24 v%d, 3072, v%d' % (vT1, vT1))
            a('v_add3_u32 v%d, v%d, v%d, s%d' % (vTR, vT0, vT1, sLDSW))
            self.srd(R_OUT, P_GW, 1280)
            a('v_lshlrev_b32 v%d, 4, v%d' % (vT0, vG))
            for ks in range(20):
                a('buffer_load_dwordx4 %s, v%d, %s, 0 offen offset:%d' % (V(vGW + 4 * ks, 4), vT0, S4(R_OUT), 64 * ks))

            def mk(k2):
                def issue(buf):
                    for ph in range(3):
                        self.dma(vWOFF + ph, R_W1, sSO, sLDSW, buf * 6144 + ph * 1024)
                    for ph in range(3):
                        self.dma(vWOFF + ph, R_W2, sSO, sLDSW, buf * 6144 + 3072 + ph * 1024)
                    a('s_add_u32 s%d, s%d, %d' % (sSO, sSO, 64 * 3072))

                def reads(buf):
                    for kk in range(2):
                        for T in range(3):
                            for h2 in range(2):
                                a('ds_read_b64_tr_b16 %s, v%d offset:%d' % (A(((2 * k2 + kk) * 3 + T) * 4 + 2 * h2, 2), vTR,
                                                                          buf * 6144 + kk * 32 * 48 + h2 * 192 + T * 16))
                return (issue, 6, reads)
            self.weight_pipeline([mk(k2) for k2 in range(10)], 5)
        if not gu:
            a('s_lshl_b32 s%d, s%d, 2' % (sT, sIDX))
            a('s_add_u32 s%d, s%d, s%d' % (sT, sT, sW))
            a('s_mul_i32 s%d, s%d, 3072' % (sT, sT))
            a('s_add_u32 s%d, s%d, s%d' % (sOUT, sOUT, sT))
            a('v_lshlrev_b32 v%d, 4, v0' % vST)
            seg_stride = 32 * 12288
        else:
            a('v_lshrrev_b32 v%d, 5, v0' % vT0)
            a('v_mul_u32_u24 v%d, %d, v%d' % (vT0, 48 * 1024, vT0))
            a('v_lshl_add_u32 v%d, v%d, 4, v%d' % (vT0, vN, vT0))
            a('v_and_b32 v%d, 1, v%d' % (vT1, vG))
            a('s_lshr_b32 s%d, s%d, 1' % (sT, sW))
            a('s_lshl_b32 s%d, s%d, 10' % (sT, sT))
            a('v_lshl_add_u32 v%d, v%d, 8, v%d' % (vST, vT1, vT0))
            a('v_add_u32 v%d, s%d, v%d' % (vST, sT, vST))
            a('s_and_b32 s%d, s%d, 1' % (sT, sW))
            a('s_lshl_b32 s%d, s%d, 9' % (sT, sT))
            a('v_add_u32 v%d, s%d, v%d' % (vST, sT, vST))
            a('v_lshl_add_u32 v%d, v%d, 3, v%d' % (vST + 1, vT1, vT0))
            a('s_lshl_b32 s%d, s%d, 8' % (sT, sW))
            a('s_add_u32 s%d, s%d, 2048' % (sT, sT))
            a('v_add_u32 v%d, s%d, v%d' % (vST + 1, sT, vST + 1))
            a('s_mul_i32 s%d, s%d, 3072' % (sT, sIDX))
            a('s_add_u32 s%d, s%d, s%d' % (sOUT, sOUT, sT))
            a('v_mov_b32 v%d, s%d' % (vT0, sW))
            a('v_or_b32 v%d, v%d, v%d' % (vT0, vT0, vG))
            a('v_cmp_eq_u32 vcc, 0, v%d' % vT0)
            a('v_lshlrev_b32 v%d, 2, v%d' % (vT0, vN))
            a('v_mov_b32 v%d, 0x%x' % (vT1, OOB))
            a('v_cndmask_b32 v%d, v%d, v%d, vcc' % (vST + 2, vT1, vT0))
            seg_stride = 96 * 1024
        a('s_mov_b32 s%d, 40960' % sDELTA)
        a('s_waitcnt vmcnt(0)')
        a('s_barrier')
        lp = a.label('L_ba_loop')
        a(lp + ':')
        a('s_add_u32 s%d, s%d, s%d' % (sXM, sXM, sDELTA))
        a('s_add_u32 s%d, s%d, 40960' % (sXS, sXS))
        for i in range(10):
            self.dma(vXO + i, R_X, sXS, sXM, 1024 * i)
        PD = 3

        def rd(ks):
            for half in range(2):
                a('ds_read_b128 %s, v%d offset:%d' % (V(vB + ((ks % 4) * 2 + half) * 4, 4), vXA + (ks % 4), (ks // 4) * 256 + half * 20480))

        def body(with_gate):
            for ks in range(PD):
                rd(ks)
            for ks in range(20):
                if ks + PD < 20:
                    rd(ks + PD)
                ahead = min(PD, 19 - ks)
                a('s_waitcnt lgkmcnt(%d)' % (2 * ahead))
                for T in range(3):
                    for half in range(2):
                        acc = V(vACC + (T * 2 + half) * 4, 4)
                        a('v_mfma_f32_16x16x32_bf16 %s, %s, %s, %s' % (acc, A((ks * 3 + T) * 4, 4), V(vB + ((ks % 4) * 2 + half) * 4, 4), acc if ks else '0'))
                if with_gate:
                    for half in range(2):
                        acc = V(vGA + half * 4, 4)
                        a('v_mfma_f32_16x16x32_bf16 %s, %s, %s, %s' % (acc, V(vGW + 4 * ks, 4), V(vB + ((ks % 4) * 2 + half) * 4, 4), acc if ks else '0'))
        if not gu:
            body(False)
            for half in range(2):
                for T in range(2):
                    for p in range(2):
                        s = vACC + (T * 2 + half) * 4 + 2 * p
                        a('v_cvt_pk_bf16_f32 v%d, v%d, v%d' % (vO + half * 4 + T * 2 + p, s, s + 1))
                for p in range(2):
                    s = vACC + (4 + half) * 4 + 2 * p
                    a('v_cvt_pk_bf16_f32 v%d, v%d, v%d' % (vO + 8 + half * 2 + p, s, s + 1))
            for pc in range(3):
                a('buffer_store_dwordx4 %s, v%d, %s, s%d offen offset:%d sc1' % (V(vO + 4 * pc, 4), vST, S4(R_WS), sOUT, 1024 * pc))
        else:
            lg, lj = a.label('L_gu_g'), a.label('L_gu_j')
            a('s_and_b32 s%d, s%d, 15' % (sT, sSEG))
            a('s_cmp_eq_u32 s%d, s%d' % (sT, sIDX))
            a('s_cbranch_scc1 ' + lg)
            body(False)
            a('s_branch ' + lj)
            a(lg + ':')
            body(True)
            a('s_lshl_b32 s%d, s%d, 7' % (sT, sSEG))
            a('s_add_u32 s%d, s%d, 0x%x' % (sT, sT, GBUF))
            for half in range(2):
                r = vGA + half * 4
                a('v_mul_f32 v%d, 0xbfb8aa3b, v%d' % (r, r))
                a('v_exp_f32 v%d, v%d' % (r, r))
                a('v_add_f32 v%d, 1.0, v%d' % (r, r))
                a('v_rcp_f32 v%d, v%d' % (r, r))
                a('s_nop 0')
                a('buffer_store_dword v%d, v%d, %s, s%d offen offset:%d sc1' % (r, vST + 2, S4(R_WS), sT, 64 * half))
            a(lj + ':')
            a('s_nop 7')
            c1 = 0.7978845608028654 * 2 * 1.4426950408889634
            import struct
            f2h = lambda f: '0x%08x' % struct.unpack('<I', struct.pack('<f', f))[0]
            a('s_mov_b32 s77, %s' % f2h(-c1))
            a('s_mov_b32 s78, %s' % f2h(-c1 * 0.044715))
            for T in range(3):
                X, Y = vACC + T * 8, vACC + T * 8 + 4
                for r in range(4):
                    a('v_permlane32_swap_b32 v%d, v%d' % (X + r, Y + r))
                for r in range(4):
                    a('v_mul_f32 v%d, v%d, v%d' % (vO + r, X + r, X + r))
                for r in range(4):
                    a('v_mov_b32 v%d, s77' % (vO + 4 + r))
                    a('v_fma_f32 v%d, v%d, s78, v%d' % (vO + r, vO + r, vO + 4 + r))
                for r in range(4):
                    a('v_mul_f32 v%d, v%d, v%d' % (vO + r, vO + r, X + r))
                for r in range(4):
                    a('v_exp_f32 v%d, v%d' % (vO + r, vO + r))
                for r in range(4):
                    a('v_add_f32 v%d, 1.0, v%d' % (vO + r, vO + r))
                for r in range(4):
                    a('v_rcp_f32 v%d, v%d' % (vO + r, vO + r))
                for r in range(4):
                    a('v_mul_f32 v%d, v%d, v%d' % (X + r, X + r, Y + r))
                for r in range(4):
                    a('v_mul_f32 v%d, v%d, v%d' % (X + r, X + r, vO + r))
                for p in range(2):
                    a('v_cvt_pk_bf16_f32 v%d, v%d, v%d' % (vO + 8 + T * 2 + p, X + 2 * p, X + 2 * p + 1))
            a('buffer_store_dwordx4 %s, v%d, %s, s%d offen sc1' % (V(vO + 8, 4), vST, S4(R_WS), sOUT))
            a('buffer_store_dwordx2 %s, v%d, %s, s%d offen sc1' % (V(vO + 12, 2), vST + 1, S4(R_WS), sOUT))
        for m in range(4):
            a('v_add_u32 v%d, s%d, v%d' % (vXA + m, sDELTA, vXA + m))
        a('s_sub_u32 s%d, 0, s%d' % (sDELTA, sDELTA))
        a('s_add_u32 s%d, s%d, %d' % (sOUT, sOUT, seg_stride))
        self.publish_flag(vFIRST, vT0, sFLAG)
        a('s_add_u32 s%d, s%d, 1' % (sSEG, sSEG))
        a('s_cmp_lt_u32 s%d, %d' % (sSEG, self.o.get('nseg', NSEG)))
        a('s_cbranch_scc1 ' + lp)
        a('s_endpgm')

    def build(self):
        a = self.a
        en = self.o.get('roles', 'all')
        on = lambda r: en == 'all' or r in en
        self.prologue()
        from roles import add_roles
        add_roles(self, on)
        a('L_timeout:')
        a('v_mov_b32 v1, s2')
        a('v_mov_b32 v2, 32')
        a('v_lshlrev_b32 v1, 8, v1')
        a('v_or_b32 v1, s%d, v1' % sSEG)
        a('v_or_b32 v1, 0x10000, v1')
        a('buffer_store_dword v1, v2, %s, 0 offen sc1' % S4(R_DBG))
        a('L_end:')
        a('s_endpgm')
        body, npad = a.render()
        hdr = open(os.path.join(os.path.dirname(os.path.abspath(__file__)), '..', 'cdna_kernels', NAME + '.s.ref')).read().split('\n')
        head = []
        for ln in hdr:
            if ln.startswith('; @launch'):
                break
            head.append(ln)
        txt = '\n'.join(head) + '\n'
        txt += '; @launch grid=(256,1,1) block=(256,1,1) lds=%d\n' % LDS_BYTES
        txt += '.amdgcn_target "amdgcn-amd-amdhsa--gfx950"\n.text\n.globl %s_kernel\n.p2align 8\n.type %s_kernel,@function\n%s_kernel:\n' % (NAME, NAME, NAME)
        txt += body
        txt += '.section .rodata,"a"\n.p2align 6\n.amdhsa_kernel %s_kernel\n' % NAME
        txt += '  .amdhsa_next_free_vgpr 512\n  .amdhsa_next_free_sgpr 102\n  .amdhsa_accum_offset 256\n  .amdhsa_group_segment_fixed_size 0\n'
        txt += '  .amdhsa_kernarg_size 120\n  .amdhsa_user_sgpr_count 2\n  .amdhsa_user_sgpr_kernarg_segment_ptr 1\n  .amdhsa_system_sgpr_workgroup_id_x 1\n'
        txt += '.end_amdhsa_kernel\n'
        return txt


if __name__ == '__main__':
    import argparse
    ap = argparse.ArgumentParser()
    ap.add_argument('-o', default=os.path.join(os.path.dirname(os.path.abspath(__file__)), '..', 'cdna_kernels', NAME + '.s'))
    ap.add_argument('--roles', default='all')
    ap.add_argument('--nseg', type=int, default=NSEG)
    ap.add_argument('--opt', action='append', default=[])
    args = ap.parse_args()
    opts = {'roles': args.roles if args.roles == 'all' else args.roles.split(','), 'nseg': args.nseg}
    for kv in args.opt:
        k, v = kv.split('=')
        opts[k] = int(v)
    g = Gen(opts)
    txt = g.build()
    open(args.o, 'w').write(txt)
    print('wrote', args.o, len(txt), 'bytes')
```
